```python
import torch

def _softmax(x, axis=-1):
    return torch.softmax(x, dim=axis)
def _gelu(x):
    return torch.nn.functional.gelu(x, approximate="tanh")
def _silu(x):
    return torch.nn.functional.silu(x)
def _sigmoid(x):
    return torch.sigmoid(x)
def _layernorm(x, axis=-1, eps=1e-5):
    m = x.mean(dim=axis, keepdim=True)
    v = x.var(dim=axis, keepdim=True, unbiased=False)
    return (x - m) / torch.sqrt(v + eps)
def _scatter_add(tgt, idx, src, axis=0):
    return tgt.clone().index_add_(axis, idx, src)
def _segment_sum(src, seg, n):
    out = torch.zeros((n,) + src.shape[1:], dtype=src.dtype)
    return out.index_add_(0, seg, src)
def _pad(x, pw):
    flat = tuple(v for pair in reversed(pw) for v in pair)
    return torch.nn.functional.pad(x, flat)

kernel_name = 'parallel_sum__ssm_conv_s4__glu_gated_swiglu__prompt'

def setup_inputs():

    _w = (lambda a: (lambda t: t.to(torch.bfloat16) if t.is_floating_point() else t)(torch.as_tensor(a)))
    def _A_setup():
        B, L, D, N = 1, 2048, 640, 192
        A_re = -(lambda _x: torch.exp(torch.as_tensor(_x)))((lambda *s: torch.randn(*s, dtype=torch.bfloat16) * 6.4)(D, N))
        A_im = torch.pi * (lambda *s: torch.randn(*s, dtype=torch.bfloat16) * 0.05)(D, N)
        B_re = (lambda *s: torch.randn(*s, dtype=torch.bfloat16) * 0.1)(D, N)
        B_im = (lambda *s: torch.randn(*s, dtype=torch.bfloat16) * 0.1)(D, N)
        C_re = (lambda *s: torch.randn(*s, dtype=torch.bfloat16) * 0.1)(D, N)
        C_im = (lambda *s: torch.randn(*s, dtype=torch.bfloat16) * 0.1)(D, N)
        log_dt = (lambda *s: torch.randn(*s, dtype=torch.bfloat16) * 0.05)(D) * 0.5 - 4.0
        Dskip = (lambda *s: torch.randn(*s, dtype=torch.bfloat16) * 0.05)(D)
        return {
            "u": _w((lambda *s: torch.randn(*s, dtype=torch.bfloat16) * 0.05)(B, L, D)),
            "A_re": _w(A_re),
            "A_im": _w(A_im),
            "B_re": _w(B_re),
            "B_im": _w(B_im),
            "C_re": _w(C_re),
            "C_im": _w(C_im),
            "log_dt": _w(log_dt),
            "Dskip": _w(Dskip),
        }
    _A_in = _A_setup()

    def _B_setup():
        B, S, D, F = 1, 2048, 640, 1536
        return {
            "x": _w((lambda *s: torch.randn(*s, dtype=torch.bfloat16) * 0.05)(B, S, D)),
            "w1": _w((lambda *s: torch.randn(*s, dtype=torch.bfloat16) * 0.4)(D, F) * (2.0 / D) ** 0.5),
            "w3": _w((lambda *s: torch.randn(*s, dtype=torch.bfloat16) * 0.4)(D, F) * (2.0 / D) ** 0.5),
            "w2": _w((lambda *s: torch.randn(*s, dtype=torch.bfloat16) * 0.4)(F, D) * (2.0 / F) ** 0.5),
        }
    _B_in = _B_setup()

    return {
        "A_u": _A_in["u"],
        "A_A_re": _A_in["A_re"],
        "A_A_im": _A_in["A_im"],
        "A_B_re": _A_in["B_re"],
        "A_B_im": _A_in["B_im"],
        "A_C_re": _A_in["C_re"],
        "A_C_im": _A_in["C_im"],
        "A_log_dt": _A_in["log_dt"],
        "A_Dskip": _A_in["Dskip"],
        "B_x": _B_in["x"],
        "B_w1": _B_in["w1"],
        "B_w3": _B_in["w3"],
        "B_w2": _B_in["w2"],
    }

def reference(A_u, A_A_re, A_A_im, A_B_re, A_B_im, A_C_re, A_C_im, A_log_dt, A_Dskip, B_x, B_w1, B_w3, B_w2):
    def _A_ref(u, A_re, A_im, B_re, B_im, C_re, C_im, log_dt, Dskip):
        Bsz, L, D = u.shape
        dt = torch.exp(log_dt)[:, None]
        A = A_re + 1j * A_im
        Bc = B_re + 1j * B_im
        Cc = C_re + 1j * C_im
        logdA = dt * A
        dB = dt * Bc
        l = (lambda x, dt: x.to(dt))(torch.arange(L), A_re.dtype)
        P = torch.exp(logdA[:, :, None] * l[None, None, :])
        K = torch.einsum("dn,dnl,dn->dl", Cc, P, dB).real
        L2 = 2 * L
        Kp = _pad(K, ((0, 0), (0, L)))
        up = (lambda x, *d: x.permute(*d))(u, 0, 2, 1)
        up = _pad(up, ((0, 0), (0, 0), (0, L)))
        Kf = (lambda x, axes=(-2,-1): torch.fft.rfft2(x.float(), dim=axes))(Kp[:, None, :], axes=(-2, -1))
        Uf = (lambda x, axes=(-2,-1): torch.fft.rfft2(x.float(), dim=axes))(up[:, :, None, :], axes=(-2, -1))
        Yf = Uf * Kf[None, :, :, :]
        y = (lambda x, s, axes=(-2,-1): torch.fft.irfft2(x, s=s, dim=axes).to(torch.bfloat16))(Yf, (1, L2), axes=(-2, -1))[:, :, 0, :L]
        y = (lambda x, *d: x.permute(*d))(y, 0, 2, 1) + u * Dskip[None, None, :]
        return y

    def _B_ref(x, w1, w3, w2):
        gate = torch.einsum("bsd,df->bsf", x, w1)
        up = torch.einsum("bsd,df->bsf", x, w3)
        h = _silu(gate) * up
        out = torch.einsum("bsf,fd->bsd", h, w2)
        return out

    x = A_u
    xn = _layernorm(x, axis=-1)
    return x + _A_ref(xn, A_A_re, A_A_im, A_B_re, A_B_im, A_C_re, A_C_im, A_log_dt, A_Dskip) + _B_ref(xn, B_w1, B_w3, B_w2)
```

```python
import re

REG_RE = re.compile(r'(?<![\w.])([vsa])(\d+)(?![\w\[])|(?<![\w.])([vsa])\[(\d+):(\d+)\]')


def regs_of(tok):
    out = set()
    for m in REG_RE.finditer(tok):
        if m.group(1):
            out.add((m.group(1), int(m.group(2))))
        else:
            for i in range(int(m.group(4)), int(m.group(5)) + 1):
                out.add((m.group(3), i))
    t = tok.strip()
    if re.search(r'(?<![\w])vcc(?![\w])', t):
        out.add(('s', 'vcc'))
    if re.search(r'(?<![\w])m0(?![\w])', t):
        out.add(('s', 'm0'))
    if re.search(r'(?<![\w])exec(?![\w])', t):
        out.add(('s', 'exec'))
    return out


TRANS = ('v_exp_f32', 'v_log_f32', 'v_rcp_f32', 'v_rsq_f32', 'v_sqrt_f32', 'v_sin_f32', 'v_cos_f32', 'v_rcp_iflag_f32')


class Ins:
    __slots__ = ('text', 'op', 'ops', 'dst', 'src', 'kind', 'ws', 'srcc', 'passes', 'srcab')

    def __init__(self, text):
        self.text = text
        t = text.split(';')[0].strip()
        self.dst = set(); self.src = set(); self.srcc = set(); self.srcab = set()
        self.passes = 0
        self.ws = 1
        if not t or t.endswith(':') or t.startswith('.'):
            self.op = ''; self.ops = []; self.kind = 'none'; self.ws = 0
            return
        parts = t.split(None, 1)
        self.op = op = parts[0]
        rest = parts[1] if len(parts) > 1 else ''
        ops = []; depth = 0; cur = ''
        for ch in rest:
            if ch == '[': depth += 1
            if ch == ']': depth -= 1
            if ch == ',' and depth == 0:
                ops.append(cur.strip()); cur = ''
            else:
                cur += ch
        if cur.strip(): ops.append(cur.strip())
        self.ops = ops
        R = [regs_of(o.split(' ')[0] if not o.startswith('-') and not o.startswith('abs') else o) for o in ops]
        R = [regs_of(o) for o in ops]
        if op == 's_nop':
            self.kind = 'nop'; self.ws = int(ops[0], 0) + 1
        elif op.startswith('v_mfma'):
            self.kind = 'mfma'
            self.dst = R[0]; self.srcab = R[1] | R[2]; self.srcc = R[3]; self.src = self.srcab | self.srcc
            self.passes = 8 if '32x32' in op else 4
        elif op.startswith('v_'):
            self.kind = 'trans' if op.replace('_e32', '').replace('_e64', '') in TRANS else 'valu'
            if op.startswith('v_cmp'):
                self.dst = R[0]; self.src = set().union(*R[1:]) if len(R) > 1 else set()
            elif op.startswith(('v_add_co', 'v_sub_co', 'v_addc_co', 'v_subb_co', 'v_subrev_co')):
                self.dst = R[0] | R[1]; self.src = set().union(*R[2:])
            elif op.startswith('v_permlane') and 'swap' in op:
                self.dst = R[0] | R[1]; self.src = R[0] | R[1]
            else:
                self.dst = R[0]; self.src = set().union(*R[1:]) if len(R) > 1 else set()
                if op.startswith(('v_fmac', 'v_dot2c', 'v_pk_fmac', 'v_writelane')) or 'd16' in op:
                    self.src |= R[0]
                if op.startswith('v_cndmask') and len(ops) == 3:
                    self.src.add(('s', 'vcc'))
                if '_dpp' in op or 'row_' in text or 'quad_perm' in text or 'wave_' in text:
                    self.src |= R[0]
        elif op.startswith(('buffer_', 'global_', 'flat_')):
            self.kind = 'vmem'
            lds = re.search(r'(?<![\w])lds(?![\w])', t) is not None or 'load_lds' in op
            if op.startswith('buffer_inv') or op.startswith('buffer_wbl2'):
                pass
            elif 'load' in op and not lds:
                self.dst = R[0]; self.src = set().union(*R[1:])
                if 'd16' in op: self.src |= R[0]
            elif 'atomic' in op:
                self.src = set().union(*R)
                if 'sc0' in t: self.dst = R[0]
            else:
                self.src = set().union(*R) if R else set()
            if lds: self.src.add(('s', 'm0'))
        elif op.startswith('ds_'):
            self.kind = 'ds'
            if op.startswith(('ds_read', 'ds_bpermute', 'ds_permute', 'ds_swizzle')) or '_rtn' in op:
                self.dst = R[0]; self.src = set().union(*R[1:]) if len(R) > 1 else set()
                if 'd16' in op: self.src |= R[0]
            else:
                self.src = set().union(*R) if R else set()
            if 'addtid' in op: self.src.add(('s', 'm0'))
        elif op.startswith('s_'):
            self.kind = 'salu'
            if op.startswith(('s_cmp', 's_cbranch', 's_branch', 's_waitcnt', 's_barrier', 's_endpgm', 's_setprio', 's_sleep', 's_bitcmp', 's_setpc')):
                self.src = set().union(*R) if R else set()
            else:
                self.dst = R[0] if R else set(); self.src = set().union(*R[1:]) if len(R) > 1 else set()
                if 'saveexec' in op: self.dst = self.dst | {('s', 'exec')}
        else:
            raise ValueError('unknown instruction class: ' + text)


def is_v(r): return r[0] in ('v', 'a')
def is_s(r): return r[0] == 's'


def need_between(p, c):
    n = 0
    pk, ck = p.kind, c.kind
    valu_p = pk in ('valu', 'trans')
    valu_c = ck in ('valu', 'trans')
    pv = {r for r in p.dst if is_v(r)}
    ps = {r for r in p.dst if is_s(r)}
    if valu_p:
        if ck == 'mfma' and pv & c.src: n = max(n, 2)
        if valu_c and pv & c.src:
            if c.op.startswith(('v_readlane', 'v_readfirstlane')): n = max(n, 1)
            if c.op.startswith('v_permlane'): n = max(n, 2)
            if '_dpp' in c.op or 'row_' in c.text or 'quad_perm' in c.text or 'wave_' in c.text: n = max(n, 2)
            if pk == 'trans' and ck != 'trans': n = max(n, 1)
            if 'sdwa' in p.op or ('op_sel' in p.text and not p.op.startswith('v_pk')): n = max(n, 1)
        if pk == 'trans' and ck in ('vmem', 'ds') and pv & c.src: n = max(n, 1)
        if ps:
            if valu_c and ps & c.src:
                n = max(n, 4 if c.op.startswith(('v_readlane', 'v_writelane')) else 2)
            if ck == 'vmem' and ps & c.src: n = max(n, 5)
            if ck == 'salu' and ps & c.src: n = max(n, 1)
            if ('s', 'exec') in ps: n = max(n, 5)
    if pk == 'mfma':
        P = p.passes
        big = {4: 8, 8: 12}[P]
        if ck == 'mfma':
            if p.dst & c.srcab: n = max(n, big)
            if p.dst & c.srcc:
                if not (p.dst == c.srcc and c.passes == P): n = max(n, {4: 6, 8: 10}[P])
            elif p.dst & c.dst and not (p.dst == c.dst):
                n = max(n, {4: 6, 8: 10}[P])
        elif valu_c:
            if p.dst & (c.src | c.dst): n = max(n, big)
            if p.srcc & c.dst: n = max(n, {4: 3, 8: 7}[P])
        elif ck in ('vmem', 'ds'):
            if p.dst & (c.src | c.dst): n = max(n, big)
    if pk == 'vmem' and ('store' in p.op or 'atomic' in p.op) and ('x4' in p.op or 'x3' in p.op):
        data = set()
        if p.ops:
            data = regs_of(p.ops[0]) if p.op.startswith('buffer') else regs_of(p.ops[1])
        if data & c.dst:
            n = max(n, 2 if valu_c else 1)
    if pk == 'salu' and ('s', 'm0') in p.dst:
        if (ck == 'vmem' and ('s', 'm0') in c.src) or (ck == 'ds' and 'addtid' in c.op): n = max(n, 1)
    return n


class Asm:
    def __init__(self):
        self.lines = []
        self.uid = 0

    def __call__(self, text):
        for ln in text.split('\n'):
            ln = ln.strip()
            if ln:
                self.lines.append(ln)

    def label(self, base):
        self.uid += 1
        return f'L_{base}_{self.uid}'

    def put(self, lab):
        self.lines.append(lab + ':')

    def finish(self, verbose=False):
        ins = [Ins(l) for l in self.lines]
        WIN = 24
        out = []
        inserted = 0

        def required(hist, c):
            need = 0
            dist = 0
            for p in reversed(hist):
                if p.kind == 'none':
                    continue
                r = need_between(p, c)
                if r > dist:
                    need = max(need, r - dist)
                dist += p.ws
                if dist >= WIN:
                    break
            return need

        for c in ins:
            if c.kind != 'none':
                nd = required(out[-60:], c)
                while nd > 0:
                    k = min(nd, 16)
                    out.append(Ins(f's_nop {k-1}'))
                    inserted += 1
                    nd -= k
            out.append(c)
        labels = {}
        for i, c in enumerate(out):
            if c.kind == 'none' and c.text.endswith(':'):
                labels[c.text[:-1]] = i
        fix = []
        for i, c in enumerate(out):
            if c.op.startswith(('s_cbranch', 's_branch')):
                tgt = c.ops[0]
                if tgt in labels:
                    j = labels[tgt]
                    hist = out[max(0, i - 60):i + 1]
                    h = list(hist)
                    cnt = 0
                    k = j
                    while k < len(out) and cnt < WIN:
                        d = out[k]
                        if d.kind != 'none':
                            nd = required(h[-60:], d)
                            if nd > 0:
                                fix.append((i, tgt, d.text, nd))
                                break
                            h.append(d)
                            cnt += d.ws
                        k += 1
        if fix:
            for (i, tgt, txt, nd) in sorted(fix, key=lambda x: -x[0]):
                if verbose:
                    print('hazard across branch to', tgt, 'at', txt, 'need', nd)
                while nd > 0:
                    kk = min(nd, 16)
                    out.insert(i, Ins(f's_nop {kk-1}'))
                    nd -= kk
        if verbose:
            print('inserted nops:', inserted, 'branch fixes:', len(fix))
        return '\n'.join(('' if (c.kind == 'none' and c.text.endswith(':')) else '    ') + c.text for c in out)
```

```python
import sys
from asmdsl import Asm

NAME = 'parallel_sum__ssm_conv_s4__glu_gated_swiglu__prompt'

WS_XNF = 0x0000000
WS_XNT = 0x0280000
WS_W13 = 0x0500000
WS_W2F = 0x08C0000
WS_H   = 0x0AA0000
WS_Y   = 0x10A0000
WS_K   = 0x1320000
KROW = 4224
WS_SIZE = 0x2000000

S_X, S_ARE, S_AIM, S_BRE, S_BIM, S_CRE, S_CIM, S_LDT = 4, 6, 8, 10, 12, 14, 16, 18
S_DSK, S_BX, S_W1, S_W3, S_W2, S_OUT, S_DBG, S_WS = 20, 22, 24, 26, 28, 30, 32, 34
SRD_WS = 36
S_WAVE = 40


def srd(a, dst, ptr, size):
    a(f's_mov_b32 s{dst}, s{ptr}')
    a(f's_and_b32 s{dst+1}, s{ptr+1}, 0xffff')
    a(f's_mov_b32 s{dst+2}, {size}')
    a(f's_mov_b32 s{dst+3}, 0x20000')


def prologue(a, nwg, end):
    a(f's_cmp_ge_u32 s2, {nwg}')
    a(f's_cbranch_scc1 {end}')
    a('s_load_dwordx16 s[4:19], s[0:1], 0')
    a('s_load_dwordx16 s[20:35], s[0:1], 64')
    a('v_and_b32 v1, 63, v0')
    a('v_lshrrev_b32 v2, 6, v0')
    a(f'v_readfirstlane_b32 s{S_WAVE}, v2')
    a('s_waitcnt lgkmcnt(0)')
    srd(a, SRD_WS, S_WS, WS_SIZE)


def kernel_wrap(name, body, vgpr, accum=None, sgpr=100):
    accum = accum or min(256, (vgpr + 3) // 4 * 4)
    txt = f'''.globl {name}
.p2align 8
.type {name},@function
{name}:
{body}
    s_endpgm
'''
    desc = f'''.amdhsa_kernel {name}
  .amdhsa_next_free_vgpr {vgpr}
  .amdhsa_next_free_sgpr {sgpr}
  .amdhsa_accum_offset {accum}
  .amdhsa_group_segment_fixed_size 0
  .amdhsa_kernarg_size 128
  .amdhsa_user_sgpr_count 2
  .amdhsa_user_sgpr_kernarg_segment_ptr 1
  .amdhsa_system_sgpr_workgroup_id_x 1
.end_amdhsa_kernel
'''
    return txt, desc


def wave_sum(a, v):
    for ctl in ('quad_perm:[1,0,3,2]', 'quad_perm:[2,3,0,1]', 'row_half_mirror', 'row_mirror'):
        a(f'v_add_f32_dpp v{v}, v{v}, v{v} {ctl} row_mask:0xf bank_mask:0xf')
    a(f'v_add_f32_dpp v{v}, v{v}, v{v} row_bcast:15 row_mask:0xa bank_mask:0xf')
    a(f'v_add_f32_dpp v{v}, v{v}, v{v} row_bcast:31 row_mask:0xc bank_mask:0xf')


def rbf(a, v, tmp=None):
    a(f'v_cvt_pk_bf16_f32 v{v}, v{v}, v{v}')
    a(f'v_lshlrev_b32 v{v}, 16, v{v}')


def cmul(a, z, x, y):
    assert z != x and z != y
    a(f'v_pk_mul_f32 v[{z}:{z+1}], v[{x}:{x+1}], v[{y}:{y+1}] op_sel:[0,0] op_sel_hi:[0,1]')
    a(f'v_pk_fma_f32 v[{z}:{z+1}], v[{x}:{x+1}], v[{y}:{y+1}], v[{z}:{z+1}] op_sel:[1,1,0] op_sel_hi:[1,0,1] neg_lo:[0,1,0]')


G_ROWS = [0, 1, 2, 3, 4, 5, 6, 7, 256, 258, 260, 262, 264, 512, 516, 520, 768, 772, 776,
          1024, 1032, 1280, 1288, 1536, 1544, 1792, 1800]
assert len(G_ROWS) == 27
SLOT = {}
for r, (h0, h1) in enumerate([(0, 4), (1, 5), (2, 6), (3, 7), (256, 260), (258, 262), (260, 264), (512, 768),
                              (516, 772), (520, 776), (1024, 1536), (1032, 1544), (1280, 1792), (1288, 1800),
                              (0, 0), (0, 0)]):
    g, rr = r >> 2, r & 3
    SLOT[8 * g + rr] = h0
    SLOT[8 * g + 4 + rr] = h1
TROW = 272
TBL = 59 * TROW
PART = 8 * TBL
LDS_A = PART + 8 * 4096
LN_RS = 1296
RL_BASE = 16384


def gen_prep():
    a = Asm()
    end = 'L_prep_end'
    prologue(a, 256, end)
    W = 2
    a(f's_lshl_b32 s41, s2, 3')
    a(f's_add_u32 s41, s41, s{S_WAVE}')
    a('s_mul_i32 s42, s41, 1280')
    srd(a, 44, S_X, 2048 * 1280)
    a('v_lshlrev_b32 v2, 2, v1')
    for i in range(5):
        a(f'buffer_load_dword v{10+i}, v2, s[44:47], s42 offen offset:{256*i}')
    a(f's_mul_i32 s43, s2, 6')
    a(f's_add_u32 s43, s43, s{S_WAVE}')
    a(f's_lshl_b32 s52, s{S_WAVE}, 12')
    a(f's_add_u32 s52, s52, {RL_BASE}')
    a('s_mov_b32 s53, 0')
    L_nodma = a.label('nodma'); L_w2 = a.label('w2dma')
    a(f's_cmp_ge_u32 s{S_WAVE}, 6'); a(f's_cbranch_scc1 {L_nodma}')
    a('s_cmp_ge_u32 s43, 1440'); a(f's_cbranch_scc1 {L_nodma}')
    a('v_lshrrev_b32 v3, 3, v1')
    a('v_and_b32 v4, 7, v1')
    a('v_lshlrev_b32 v4, 4, v4')
    a('s_cmp_ge_u32 s43, 960'); a(f's_cbranch_scc1 {L_w2}')
    a('s_mov_b32 s53, 1')
    a('s_mul_hi_u32 s54, s43, 0x6666667')
    a('s_mul_i32 s55, s54, 40')
    a('s_sub_u32 s55, s43, s55')
    a('v_mul_u32_u24 v3, 3072, v3')
    a('v_add_u32 v3, v3, v4')
    a('s_mul_i32 s56, s55, 49152')
    a('s_lshl_b32 s57, s54, 7')
    a('s_add_u32 s56, s56, s57')
    for mi, ptr in enumerate((S_W1, S_W3)):
        srd(a, 48, ptr, 640 * 3072)
        for hh in range(2):
            a(f's_add_u32 m0, s52, {mi*2048 + hh*1024}')
            a(f's_add_u32 s57, s56, {hh*8*3072}')
            a('buffer_load_dwordx4 v3, s[48:51], s57 offen lds')
    a(f's_branch {L_nodma}')
    a.put(L_w2)
    a('s_mov_b32 s53, 2')
    a('s_sub_u32 s58, s43, 960')
    a('s_mul_hi_u32 s54, s58, 0x5555556')
    a('s_mul_i32 s55, s54, 48')
    a('s_sub_u32 s55, s58, s55')
    a('v_mul_u32_u24 v3, 1280, v3')
    a('v_add_u32 v3, v3, v4')
    a('s_mul_i32 s56, s55, 40960')
    a('s_lshl_b32 s57, s54, 7')
    a('s_add_u32 s56, s56, s57')
    srd(a, 48, S_W2, 1536 * 1280)
    for i in range(4):
        a(f's_add_u32 m0, s52, {i*1024}')
        a(f's_add_u32 s57, s56, {i*8*1280}')
        a('buffer_load_dwordx4 v3, s[48:51], s57 offen lds')
    a.put(L_nodma)
    a('s_waitcnt vmcnt(0)')
    F = 20
    for i in range(5):
        a(f'v_lshlrev_b32 v{F+2*i}, 16, v{10+i}')
        a(f'v_and_b32 v{F+2*i+1}, 0xffff0000, v{10+i}')
    a(f'v_add_f32 v5, v{F}, v{F+1}')
    for i in range(2, 10):
        a(f'v_add_f32 v5, v5, v{F+i}')
    wave_sum(a, 5)
    a('v_readlane_b32 s54, v5, 63')
    a('v_mov_b32 v6, s54')
    a('v_mul_f32 v6, 0x3acccccd, v6')
    a('v_mov_b32 v5, 0')
    for i in range(10):
        a(f'v_sub_f32 v7, v{F+i}, v6')
        a('v_fmac_f32 v5, v7, v7')
    wave_sum(a, 5)
    a('v_readlane_b32 s54, v5, 63')
    a('v_mov_b32 v7, s54')
    a('v_mul_f32 v7, 0x3acccccd, v7')
    rbf(a, 6)
    rbf(a, 7)
    a('v_add_f32 v7, 0x3727c5ac, v7')
    rbf(a, 7)
    a('v_sqrt_f32 v7, v7')
    rbf(a, 7)
    a('v_rcp_f32 v7, v7')
    for i in range(5):
        a(f'v_sub_f32 v{F+2*i}, v{F+2*i}, v6')
        a(f'v_sub_f32 v{F+2*i+1}, v{F+2*i+1}, v6')
        a(f'v_cvt_pk_bf16_f32 v8, v{F+2*i}, v{F+2*i+1}')
        a(f'v_lshlrev_b32 v{F+2*i}, 16, v8')
        a(f'v_and_b32 v{F+2*i+1}, 0xffff0000, v8')
        a(f'v_mul_f32 v{F+2*i}, v{F+2*i}, v7')
        a(f'v_mul_f32 v{F+2*i+1}, v{F+2*i+1}, v7')
        a(f'v_cvt_pk_bf16_f32 v{10+i}, v{F+2*i}, v{F+2*i+1}')
    a(f's_mul_i32 s54, s{S_WAVE}, {LN_RS}')
    a('v_add_u32 v3, s54, v2')
    for i in range(5):
        a(f'ds_write_b32 v3, v{10+i} offset:{256*i}')
    a('s_waitcnt lgkmcnt(0)')
    a('s_barrier')
    a('v_and_b32 v3, 7, v1')
    a('v_lshrrev_b32 v4, 3, v1')
    a(f'v_mul_u32_u24 v5, {LN_RS}, v3')
    a('v_lshl_add_u32 v5, v4, 4, v5')
    a('v_lshrrev_b32 v6, 1, v4')
    a('v_lshlrev_b32 v6, 10, v6')
    a('v_and_b32 v7, 1, v4')
    a('v_lshl_add_u32 v6, v7, 9, v6')
    a('v_lshl_add_u32 v6, v3, 4, v6')
    a('s_lshr_b32 s54, s2, 2')
    a('s_mul_i32 s54, s54, 40960')
    a('s_and_b32 s55, s2, 3')
    a('s_lshl_b32 s55, s55, 7')
    a('s_add_u32 s54, s54, s55')
    a(f's_add_u32 s54, s54, {WS_XNF}')
    a('v_and_b32 v8, 15, v1')
    a('v_lshrrev_b32 v9, 2, v8')
    a('v_sub_u32 v9, 7, v9')
    a(f'v_mul_u32_u24 v9, {LN_RS}, v9')
    a('v_and_b32 v8, 3, v1')
    a('v_lshl_add_u32 v9, v8, 3, v9')
    a('v_lshrrev_b32 v8, 4, v1')
    a('v_lshl_add_u32 v9, v8, 5, v9')
    a('v_lshlrev_b32 v15, 4, v1')
    a('s_mul_i32 s55, s2, 10240')
    a(f's_add_u32 s55, s55, {WS_XNT}')
    a(f's_mov_b32 s56, s{S_WAVE}')
    L_st = a.label('lnst')
    a.put(L_st)
    a('s_lshl_b32 s57, s56, 7')
    a('v_add_u32 v16, s57, v5')
    a('v_add_u32 v17, s57, v9')
    a('ds_read_b128 v[20:23], v16')
    a('ds_read_b64_tr_b16 v[24:25], v17')
    a(f'v_subrev_u32 v17, {4*LN_RS}, v17')
    a('ds_read_b64_tr_b16 v[26:27], v17')
    a('s_lshl_b32 s57, s56, 12')
    a('s_add_u32 s57, s57, s54')
    a('s_lshl_b32 s58, s56, 10')
    a('s_add_u32 s58, s58, s55')
    a('s_waitcnt lgkmcnt(0)')
    a(f'buffer_store_dwordx4 v[20:23], v6, s[{SRD_WS}:{SRD_WS+3}], s57 offen')
    a(f'buffer_store_dwordx4 v[24:27], v15, s[{SRD_WS}:{SRD_WS+3}], s58 offen')
    a('s_add_u32 s56, s56, 8')
    a('s_cmp_lt_u32 s56, 10')
    a(f's_cbranch_scc1 {L_st}')
    L_rl_done = a.label('rldone'); L_rl2 = a.label('rl2')
    a('s_cmp_eq_u32 s53, 0'); a(f's_cbranch_scc1 {L_rl_done}')
    a('v_and_b32 v3, 15, v1')
    a('v_lshrrev_b32 v4, 4, v1')
    a('v_lshrrev_b32 v5, 2, v3')
    a('v_and_b32 v6, 3, v3')
    a('v_lshlrev_b32 v6, 3, v6')
    a('s_cmp_eq_u32 s53, 2'); a(f's_cbranch_scc1 {L_rl2}')
    a('v_and_b32 v7, 1, v4')
    a('v_lshlrev_b32 v7, 11, v7')
    a('v_lshrrev_b32 v8, 1, v4')
    a('v_lshl_add_u32 v8, v8, 3, v5')
    a('v_lshl_add_u32 v7, v8, 7, v7')
    a('v_add3_u32 v7, v7, v6, s52')
    for ap in range(4):
        a(f'ds_read_b64_tr_b16 v[{20+4*ap}:{21+4*ap}], v7 offset:{32*ap}')
        a(f'ds_read_b64_tr_b16 v[{22+4*ap}:{23+4*ap}], v7 offset:{32*ap+512}')
    a('s_waitcnt lgkmcnt(0)')
    for ap in range(4):
        a('s_lshl_b32 s57, s54, 2') if False else None
    a('s_mul_hi_u32 s54, s43, 0x6666667')
    a('s_mul_i32 s55, s54, 40')
    a('s_sub_u32 s55, s43, s55')
    for ap in range(4):
        a('s_lshl_b32 s56, s54, 2')
        a(f's_add_u32 s56, s56, {ap}')
        a('s_mul_hi_u32 s57, s56, 0x2aaaaaab')
        a('s_mul_i32 s58, s57, 6')
        a('s_sub_u32 s58, s56, s58')
        a('s_mul_i32 s57, s57, 40')
        a('s_add_u32 s57, s57, s55')
        a('s_mul_i32 s57, s57, 6')
        a('s_add_u32 s57, s57, s58')
        a('s_lshl_b32 s57, s57, 10')
        a(f's_add_u32 s57, s57, {WS_W13}')
        a(f'buffer_store_dwordx4 v[{20+4*ap}:{23+4*ap}], v15, s[{SRD_WS}:{SRD_WS+3}], s57 offen')
    a(f's_branch {L_rl_done}')
    a.put(L_rl2)
    a('v_lshrrev_b32 v7, 1, v4')
    a('v_lshlrev_b32 v7, 4, v7')
    a('v_and_b32 v8, 1, v4')
    a('v_lshl_add_u32 v7, v8, 2, v7')
    a('v_add_u32 v7, v7, v5')
    a('v_lshlrev_b32 v7, 7, v7')
    a('v_add3_u32 v7, v7, v6, s52')
    for bp in range(4):
        a(f'ds_read_b64_tr_b16 v[{20+4*bp}:{21+4*bp}], v7 offset:{32*bp}')
        a(f'ds_read_b64_tr_b16 v[{22+4*bp}:{23+4*bp}], v7 offset:{32*bp+1024}')
    a('s_waitcnt lgkmcnt(0)')
    a('s_sub_u32 s58, s43, 960')
    a('s_mul_hi_u32 s54, s58, 0x5555556')
    a('s_mul_i32 s55, s54, 48')
    a('s_sub_u32 s55, s58, s55')
    for bp in range(4):
        a('s_lshl_b32 s56, s54, 2')
        a(f's_add_u32 s56, s56, {bp}')
        a('s_mul_hi_u32 s57, s56, 0x33333334')
        a('s_mul_i32 s58, s57, 5')
        a('s_sub_u32 s58, s56, s58')
        a('s_mul_i32 s57, s57, 48')
        a('s_add_u32 s57, s57, s55')
        a('s_mul_i32 s57, s57, 5')
        a('s_add_u32 s57, s57, s58')
        a('s_lshl_b32 s57, s57, 10')
        a(f's_add_u32 s57, s57, {WS_W2F}')
        a(f'buffer_store_dwordx4 v[{20+4*bp}:{23+4*bp}], v15, s[{SRD_WS}:{SRD_WS+3}], s57 offen')
    a.put(L_rl_done)
    a('s_waitcnt vmcnt(0) lgkmcnt(0)')
    a('s_barrier')
    a('s_and_b32 s60, s2, 7')
    a('s_mul_i32 s60, s60, 80')
    a('s_lshr_b32 s61, s2, 3')
    a('s_add_u32 s60, s60, s61')
    a('s_cmp_lt_u32 s61, 16')
    a('s_cselect_b32 s61, 9, 6')
    a(f's_mov_b32 s62, s{S_WAVE}')
    a(f's_mul_i32 s63, s{S_WAVE}, {TBL}')
    L_unit = a.label('unit'); L_unit_done = a.label('unitdone')
    a.put(L_unit)
    a('s_cmp_ge_u32 s62, s61'); a(f's_cbranch_scc1 {L_unit_done}')
    a('s_mul_hi_u32 s64, s62, 0x55555556')
    a('s_mul_i32 s65, s64, 3')
    a('s_sub_u32 s65, s62, s65')
    a('s_lshl_b32 s66, s64, 5')
    a('s_add_u32 s66, s66, s60')
    a('s_mul_i32 s67, s66, 384')
    a('s_lshl_b32 s68, s65, 7')
    a('s_add_u32 s67, s67, s68')
    a('v_lshlrev_b32 v2, 1, v1')
    for i, ptr in enumerate((S_ARE, S_AIM, S_BRE, S_BIM, S_CRE, S_CIM)):
        srd(a, 48, ptr, 640 * 384)
        a(f'buffer_load_ushort v{10+i}, v2, s[48:51], s67 offen')
    srd(a, 48, S_LDT, 1280)
    a('s_lshl_b32 s68, s66, 1')
    a('v_mov_b32 v3, 0')
    a('buffer_load_ushort v16, v3, s[48:51], s68 offen')
    a('s_waitcnt vmcnt(0)')
    for i in range(7):
        a(f'v_lshlrev_b32 v{10+i}, 16, v{10+i}')
    a('v_mul_f32 v17, 0x3fb8aa3b, v16')
    a('s_mov_b32 s68, 0x3fb8aa3b')
    a('v_fma_f32 v18, v16, s68, -v17')
    a('s_mov_b32 s68, 0x32a57060')
    a('v_fma_f32 v18, v16, s68, v18')
    a('v_exp_f32 v17, v17')
    a('v_mul_f32 v18, 0x3f317218, v18')
    a('v_fma_f32 v17, v17, v18, v17')
    rbf(a, 17)
    a('v_mul_f32 v10, v10, v17')
    a('v_mul_f32 v11, v11, v17')
    a('v_mul_f32 v12, v12, v17')
    a('v_mul_f32 v13, v13, v17')
    G = 30
    cmul(a, G, 14, 12)
    a('v_mul_f32 v10, 0x3fb8aa3b, v10')
    a('v_mul_f32 v11, 0x3e22f983, v11')
    W1, W8, W256 = 18, 20, 22
    for (dst, tau) in ((W1, 1.0), (W8, 8.0), (W256, 256.0)):
        import struct
        bits = struct.unpack('<I', struct.pack('<f', tau))[0]
        a(f'v_mul_f32 v24, {bits:#x}, v10')
        a(f'v_mul_f32 v25, {bits:#x}, v11')
        a('v_exp_f32 v24, v24')
        a('v_fract_f32 v25, v25')
        a('v_cos_f32 v26, v25')
        a('v_sin_f32 v27, v25')
        a(f'v_mul_f32 v{dst}, v24, v26')
        a(f'v_mul_f32 v{dst+1}, v24, v27')
    a('s_mov_b32 m0, s63')
    tmpi = [0]
    def put_row(row, z, neg):
        t = 4 + (tmpi[0] & 3); tmpi[0] += 1
        a(f'v_cvt_pk_bf16_f32 v{t}, v{z}, {"-" if neg else ""}v{z+1}')
        a(f'ds_write_addtid_b32 v{t} offset:{row*TROW}')
    a('v_mov_b32 v4, 0x00003f80')
    a(f'ds_write_addtid_b32 v4 offset:0')
    put_row(1, W8, False)
    e0, e1 = 24, 26
    cmul(a, e0, W8, W8); put_row(2, e0, False)
    cur, nxt = e0, e1
    gq = []
    grow = {R: 32 + i for i, R in enumerate(G_ROWS)}
    gq.append(lambda: put_row(grow[0], G, True))
    for r in range(1, 9):
        def f(r=r):
            cmul(a, G + 2*r, G + 2*(r-1), W1)
            if r < 8: put_row(grow[r], G + 2*r, True)
        gq.append(f)
    W512, W768, W1024, W1280, W1536, W1792 = 50, 52, 54, 56, 58, 60
    gq.append(lambda: cmul(a, W512, W256, W256))
    gq.append(lambda: cmul(a, W768, W512, W256))
    gq.append(lambda: cmul(a, W1024, W512, W512))
    gq.append(lambda: cmul(a, W1280, W1024, W256))
    gq.append(lambda: cmul(a, W1536, W1024, W512))
    gq.append(lambda: cmul(a, W1792, W1536, W256))
    mult = {256: W256, 512: W512, 768: W768, 1024: W1024, 1280: W1280, 1536: W1536, 1792: W1792}
    gt = [62, 64]
    k = 0
    for R in G_ROWS[8:]:
        base = R & ~255; r = R - base
        def f(R=R, base=base, r=r, t=gt[k & 1]):
            cmul(a, t, G + 2*r, mult[base]); put_row(grow[R], t, True)
        gq.append(f); k += 1
    for j in range(3, 32):
        cmul(a, nxt, cur, W8); put_row(j, nxt, False)
        cur, nxt = nxt, cur
        if gq: gq.pop(0)()
    while gq: gq.pop(0)()
    a('s_waitcnt lgkmcnt(0)')
    a('v_and_b32 v2, 31, v1')
    a('v_lshrrev_b32 v3, 5, v1')
    a('v_lshlrev_b32 v3, 4, v3')
    a(f'v_mul_u32_u24 v8, {TROW}, v2')
    a('v_add3_u32 v8, v8, v3, s63')
    tbl = [grow[SLOT[i]] - 32 for i in range(32)]
    words = [sum(tbl[4*i + b] << (8*b) for b in range(4)) for i in range(8)]
    a('v_lshrrev_b32 v4, 2, v2')
    a(f'v_mov_b32 v5, {words[0]:#x}')
    for i in range(1, 8):
        a(f'v_mov_b32 v6, {words[i]:#x}')
        a(f'v_cmp_eq_u32 vcc, {i}, v4')
        a('v_cndmask_b32 v5, v5, v6, vcc')
    a('v_and_b32 v6, 3, v2')
    a('v_lshlrev_b32 v6, 3, v6')
    a('v_lshrrev_b32 v5, v6, v5')
    a('v_and_b32 v5, 0xff, v5')
    a('v_add_u32 v5, 32, v5')
    a(f'v_mul_u32_u24 v9, {TROW}, v5')
    a('v_add3_u32 v9, v9, v3, s63')
    D = 64
    for r in range(16):
        a(f'v_mov_b32 v{D+r}, 0')
    for ks in range(8):
        a(f'ds_read_b128 v[{80+8*(ks&1)}:{83+8*(ks&1)}], v9 offset:{ks*32}')
        a(f'ds_read_b128 v[{84+8*(ks&1)}:{87+8*(ks&1)}], v8 offset:{ks*32}')
        a('s_waitcnt lgkmcnt(0)')
        a(f'v_mfma_f32_32x32x16_bf16 v[{D}:{D+15}], v[{80+8*(ks&1)}:{83+8*(ks&1)}], v[{84+8*(ks&1)}:{87+8*(ks&1)}], v[{D}:{D+15}]')
    a('s_lshl_b32 s64, s62, 12')
    a(f's_add_u32 s64, s64, {PART}')
    a('s_cmp_lt_u32 s62, 8')
    a('s_cselect_b32 s64, s64, s63')
    a('v_lshlrev_b32 v2, 4, v1')
    a('v_add_u32 v2, s64, v2')
    for g in range(4):
        a(f'ds_write_b128 v2, v[{D+4*g}:{D+4*g+3}] offset:{1024*g}')
    a('s_add_u32 s62, s62, 8')
    a(f's_branch {L_unit}')
    a.put(L_unit_done)
    a('s_waitcnt lgkmcnt(0)')
    a('s_barrier')
    L_kdone = a.label('kdone')
    a('s_lshr_b32 s62, s61, 1')
    a('s_cmp_eq_u32 s61, 9')
    a('s_cselect_b32 s62, 3, 2')
    a(f's_cmp_ge_u32 s{S_WAVE}, s62'); a(f's_cbranch_scc1 {L_kdone}')
    a(f's_mul_i32 s63, s{S_WAVE}, 3')
    a('v_lshlrev_b32 v2, 4, v1')
    D = 64
    for jj in range(3):
        a(f's_add_u32 s64, s63, {jj}')
        a('s_lshl_b32 s65, s64, 12')
        a(f's_add_u32 s65, s65, {PART}')
        a('s_cmp_lt_u32 s64, 8')
        a('s_cselect_b32 s65, s65, 0')
        a('v_add_u32 v3, s65, v2')
        for g in range(4):
            a(f'ds_read_b128 v[{16+16*jj+4*g}:{19+16*jj+4*g}], v3 offset:{1024*g}')
    a('s_waitcnt lgkmcnt(0)')
    for r in range(16):
        a(f'v_add_f32 v{D+r}, v{16+r}, v{32+r}')
        a(f'v_add_f32 v{D+r}, v{D+r}, v{48+r}')
    a(f's_lshl_b32 s64, s{S_WAVE}, 5')
    a('s_add_u32 s64, s64, s60')
    a(f's_mul_i32 s65, s64, {KROW}')
    a(f's_add_u32 s65, s65, {WS_K}')
    a('v_and_b32 v2, 31, v1')
    a('v_lshrrev_b32 v3, 5, v1')
    a('v_mov_b32 v4, 0')
    a('v_lshlrev_b32 v5, 2, v1')
    a('v_cmp_gt_u32 vcc, 8, v1')
    a('s_and_saveexec_b64 s[66:67], vcc')
    a(f'buffer_store_dword v4, v5, s[{SRD_WS}:{SRD_WS+3}], s65 offen')
    a('s_mov_b64 exec, s[66:67]')
    a('s_add_u32 s65, s65, 32')
    R = lambda r: D + r
    a('v_lshlrev_b32 v4, 4, v2')
    a('v_lshl_add_u32 v4, v3, 3, v4')
    a(f'v_cvt_pk_bf16_f32 v10, v{R(0)}, v{R(1)}')
    a(f'v_cvt_pk_bf16_f32 v11, v{R(2)}, v{R(3)}')
    a(f'buffer_store_dwordx2 v[10:11], v4, s[{SRD_WS}:{SRD_WS+3}], s65 offen')
    a(f'v_cvt_pk_bf16_f32 v12, v{R(4)}, v{R(4)}')
    a(f'v_cvt_pk_bf16_f32 v13, v{R(5)}, v{R(6)}')
    a(f'buffer_store_dwordx2 v[12:13], v4, s[{SRD_WS}:{SRD_WS+3}], s65 offen offset:512')
    a('v_lshlrev_b32 v5, 4, v2')
    a('v_lshl_add_u32 v6, v3, 9, v5')
    a(f'v_cvt_pk_bf16_f32 v16, v{R(7)}, v{R(7)}')
    a(f'v_cvt_pk_bf16_f32 v17, v{R(7)}, v{R(8)}')
    a(f'v_cvt_pk_bf16_f32 v18, v{R(8)}, v{R(8)}')
    a(f'v_cvt_pk_bf16_f32 v19, v{R(9)}, v{R(9)}')
    a(f'buffer_store_dwordx4 v[16:19], v6, s[{SRD_WS}:{SRD_WS+3}], s65 offen offset:1024')
    a('v_lshl_add_u32 v6, v3, 10, v5')
    a('v_and_b32 v7, 1, v2')
    a('v_cmp_eq_u32 vcc, 1, v7')
    for bi, (ra, rb_) in enumerate(((10, 11), (12, 13))):
        t = 20 + 4*bi
        a(f'v_cndmask_b32 v8, v{R(ra)}, v{R(rb_)}, vcc')
        a(f'v_cvt_pk_bf16_f32 v{t}, v{R(ra)}, v{R(ra)}')
        a(f'v_mov_b32 v{t+1}, v{t}')
        a(f'v_cvt_pk_bf16_f32 v{t+2}, v8, v{R(rb_)}')
        a(f'v_cvt_pk_bf16_f32 v{t+3}, v{R(rb_)}, v{R(rb_)}')
        a(f'buffer_store_dwordx4 v[{t}:{t+3}], v6, s[{SRD_WS}:{SRD_WS+3}], s65 offen offset:{2048 + 512*bi}')
    a.put(L_kdone)
    a('s_waitcnt vmcnt(0)')
    a.put(end)
    return kernel_wrap('prep_kernel', a.finish(), 128), LDS_A


COPY_O = (0, 1, 4, 5, 8, 8, 11, 12)
CP_STRIDE = 4352
CP_SIZE = 8 * CP_STRIDE


def gen_conv():
    a = Asm()
    end = 'L_conv_end'
    prologue(a, 256, end)
    WL = 4352 + 4608 + CP_SIZE
    a('s_and_b32 s60, s2, 7')
    a('s_mul_i32 s60, s60, 80')
    a('s_lshr_b32 s61, s2, 3')
    a('s_add_u32 s60, s60, s61')
    a('s_cmp_lt_u32 s61, 16')
    a('s_cselect_b32 s61, 3, 2')
    a(f's_cmp_ge_u32 s{S_WAVE}, s61'); a(f's_cbranch_scc1 {end}')
    a(f's_lshl_b32 s62, s{S_WAVE}, 5')
    a('s_add_u32 s62, s62, s60')
    a(f's_mul_i32 s63, s{S_WAVE}, {WL}')
    a('s_add_u32 s64, s63, 4352')
    a('s_add_u32 s65, s64, 4608')
    a('v_lshlrev_b32 v2, 4, v1')
    a(f's_mul_i32 s66, s62, {KROW}')
    a(f's_add_u32 s66, s66, {WS_K}')
    for i in range(4):
        a(f's_add_u32 m0, s63, {1024*i}')
        a(f's_add_u32 s67, s66, {1024*i}')
        a(f'buffer_load_dwordx4 v2, s[{SRD_WS}:{SRD_WS+3}], s67 offen lds')
    a('v_cmp_gt_u32 vcc, 8, v1')
    a('s_and_saveexec_b64 s[68:69], vcc')
    a(f's_add_u32 m0, s63, 4096')
    a(f's_add_u32 s67, s66, 4096')
    a(f'buffer_load_dwordx4 v2, s[{SRD_WS}:{SRD_WS+3}], s67 offen lds')
    a('s_mov_b64 exec, s[68:69]')
    a('v_mul_u32_u24 v3, 10240, v1')
    a('s_lshl_b32 s66, s62, 4')
    a(f's_add_u32 s66, s66, {WS_XNT}')
    for i in range(4):
        a(f's_add_u32 m0, s64, {512 + 1024*i}')
        a(f's_add_u32 s67, s66, {64*10240*i}')
        a(f'buffer_load_dwordx4 v3, s[{SRD_WS}:{SRD_WS+3}], s67 offen lds')
    for r in range(4):
        a(f'v_mov_b32 v{4+r}, 0')
    a('v_add_u32 v8, s64, v2')
    a('v_cmp_gt_u32 vcc, 32, v1')
    a('s_and_saveexec_b64 s[68:69], vcc')
    a('ds_write_b128 v8, v[4:7]')
    a('s_mov_b64 exec, s[68:69]')
    srd(a, 48, S_DSK, 1280)
    a('s_lshl_b32 s67, s62, 1')
    a('v_mov_b32 v9, 0')
    a('buffer_load_ushort v9, v9, s[48:51], s67 offen')
    a('s_waitcnt vmcnt(0) lgkmcnt(0)')
    a('v_lshlrev_b32 v9, 16, v9')
    for it in range(5):
        if it == 4:
            a('v_cmp_gt_u32 vcc, 2, v1')
            a('s_and_saveexec_b64 s[68:69], vcc')
        a('v_add_u32 v10, s63, v2')
        a(f'ds_read_b128 v[12:15], v10 offset:{1024*it}')
        a(f'ds_read_b128 v[16:19], v10 offset:{1024*it+16}')
        a('v_add_u32 v11, s65, v2')
        a('s_waitcnt lgkmcnt(0)')
        w = [12 + i for i in range(8)]
        for k in range(7):
            a(f'v_alignbyte_b32 v{20+k}, v{w[k+1]}, v{w[k]}, 2')
        for k in range(1, 7):
            a(f'v_mov_b32 v{27+k}, v{w[k]}')
            a(f'v_mov_b32 v{33+k}, v{20+k}')
        srcs = {0: 12, 2: 28, 4: 14, 6: 30, 1: 20, 3: 34, 5: 22, 7: 36}
        for c in range(8):
            a(f'ds_write_b128 v11, v[{srcs[c]}:{srcs[c]+3}] offset:{c*CP_STRIDE + 16*COPY_O[c] + 1024*it}')
        if it == 4:
            a('s_mov_b64 exec, s[68:69]')
    a('s_waitcnt lgkmcnt(0)')
    a('v_and_b32 v10, 15, v1')
    a('v_lshrrev_b32 v11, 4, v1')
    a('v_add_u32 v12, 1, v10')
    a('v_and_b32 v12, 7, v12')
    a(f'v_mul_u32_u24 v13, {CP_STRIDE}, v12')
    ow = sum(COPY_O[c] << (4*c) for c in range(8))
    a(f'v_mov_b32 v14, {ow:#x}')
    a('v_lshlrev_b32 v15, 2, v12')
    a('v_lshrrev_b32 v14, v15, v14')
    a('v_and_b32 v14, 15, v14')
    a('v_subrev_u32 v15, 7, v10')
    a('v_ashrrev_i32 v15, 3, v15')
    a('v_add_u32 v14, v14, v15')
    a('v_lshrrev_b32 v15, 1, v11')
    a('v_lshl_add_u32 v14, v15, 1, v14')
    a('v_and_b32 v15, 1, v11')
    a('v_sub_u32 v14, v14, v15')
    a('v_add_u32 v14, 2, v14')
    a('v_lshl_add_u32 v13, v14, 4, v13')
    a('v_add_u32 v2, s65, v13')
    a('v_lshlrev_b32 v13, 5, v10')
    a('v_lshrrev_b32 v15, 1, v11')
    a('v_lshlrev_b32 v15, 5, v15')
    a('v_sub_u32 v13, v13, v15')
    a('v_and_b32 v15, 1, v11')
    a('v_lshl_add_u32 v13, v15, 4, v13')
    a('v_add_u32 v13, 512, v13')
    a('v_add_u32 v3, s64, v13')
    ACC = 64
    BF = 96
    AF = 128
    for r in range(32):
        a(f'v_mov_b32 v{ACC+r}, 0')
    a('s_mov_b32 s66, 0')
    L = a.label('p0')
    a.put(L)
    for j in range(8):
        a(f'ds_read_b128 v[{BF+4*j}:{BF+4*j+3}], v3 offset:{512*j}')
    a(f'ds_read_b128 v[{AF}:{AF+3}], v2')
    for q in range(8):
        if q < 7:
            nb = AF + 4*((q+1) & 1)
            a(f'ds_read_b128 v[{nb}:{nb+3}], v2 offset:{512*(q+1)}')
            a('s_waitcnt lgkmcnt(1)')
        else:
            a('s_waitcnt lgkmcnt(0)')
        cb = AF + 4*(q & 1)
        for j in range(q, 8):
            a(f'v_mfma_f32_16x16x32_bf16 v[{ACC+4*j}:{ACC+4*j+3}], v[{cb}:{cb+3}], v[{BF+4*(j-q)}:{BF+4*(j-q)+3}], v[{ACC+4*j}:{ACC+4*j+3}]')
    a('v_add_u32 v2, 64, v2')
    a('v_subrev_u32 v3, 64, v3')
    a('s_add_u32 s66, s66, 1')
    a('s_cmp_lt_u32 s66, 8')
    a(f's_cbranch_scc1 {L}')
    a('v_lshlrev_b32 v13, 5, v10')
    a('v_lshrrev_b32 v15, 1, v11')
    a('v_lshl_add_u32 v13, v15, 4, v13')
    a('v_and_b32 v15, 1, v11')
    a('v_sub_u32 v15, 1, v15')
    a('v_lshl_add_u32 v13, v15, 3, v13')
    a('v_add_u32 v13, 512, v13')
    a('v_add_u32 v13, s64, v13')
    for j in range(8):
        a(f'ds_read_b64 v[{BF+2*j}:{BF+2*j+1}], v13 offset:{512*j}')
    a('v_lshlrev_b32 v14, 5, v10')
    a('v_lshl_add_u32 v14, v11, 3, v14')
    a('s_lshl_b32 s66, s62, 12')
    a(f's_add_u32 s66, s66, {WS_Y}')
    a('s_waitcnt lgkmcnt(0)')
    for j in range(8):
        u0, u1 = BF + 2*j, BF + 2*j + 1
        a(f'v_and_b32 v16, 0xffff0000, v{u1}')
        a(f'v_lshlrev_b32 v17, 16, v{u1}')
        a(f'v_and_b32 v18, 0xffff0000, v{u0}')
        a(f'v_lshlrev_b32 v19, 16, v{u0}')
        for r in range(4):
            a(f'v_mul_f32 v{16+r}, v{16+r}, v9')
        a('v_cvt_pk_bf16_f32 v20, v16, v17')
        a('v_cvt_pk_bf16_f32 v21, v18, v19')
        a(f'v_cvt_pk_bf16_f32 v22, v{ACC+4*j}, v{ACC+4*j+1}')
        a(f'v_cvt_pk_bf16_f32 v23, v{ACC+4*j+2}, v{ACC+4*j+3}')
        for (src, o) in ((20, 16), (21, 18), (22, 24), (23, 26)):
            a(f'v_lshlrev_b32 v{o}, 16, v{src}')
            a(f'v_and_b32 v{o+1}, 0xffff0000, v{src}')
        for r in range(4):
            a(f'v_add_f32 v{16+r}, v{16+r}, v{24+r}')
        a(f'v_cvt_pk_bf16_f32 v{28+2*(j&1)}, v16, v17')
        a(f'v_cvt_pk_bf16_f32 v{29+2*(j&1)}, v18, v19')
        a(f'buffer_store_dwordx2 v[{28+2*(j&1)}:{29+2*(j&1)}], v14, s[{SRD_WS}:{SRD_WS+3}], s66 offen offset:{512*j}')
    a('s_waitcnt vmcnt(0)')
    a.put(end)
    return kernel_wrap('conv_kernel', a.finish(), 144), 3 * WL


G1_NST = 7
G1_STAGE = 20480


def silu_mul(a, g, u, t, out, mimic=True):
    if mimic:
        a(f'v_cvt_pk_bf16_f32 v{t}, v{g}, v{g+1}')
        a(f'v_cvt_pk_bf16_f32 v{t+1}, v{u}, v{u+1}')
        a(f'v_lshlrev_b32 v{g}, 16, v{t}')
        a(f'v_and_b32 v{g+1}, 0xffff0000, v{t}')
        a(f'v_lshlrev_b32 v{u}, 16, v{t+1}')
        a(f'v_and_b32 v{u+1}, 0xffff0000, v{t+1}')
    a(f'v_mul_f32 v{t}, 0xbfb8aa3b, v{g}')
    a(f'v_mul_f32 v{t+1}, 0xbfb8aa3b, v{g+1}')
    a(f'v_exp_f32 v{t}, v{t}')
    a(f'v_exp_f32 v{t+1}, v{t+1}')
    a(f'v_add_f32 v{t}, 1.0, v{t}')
    a(f'v_add_f32 v{t+1}, 1.0, v{t+1}')
    a(f'v_rcp_f32 v{t}, v{t}')
    a(f'v_rcp_f32 v{t+1}, v{t+1}')
    a(f'v_mul_f32 v{t}, v{t}, v{g}')
    a(f'v_mul_f32 v{t+1}, v{t+1}, v{g+1}')
    if mimic:
        a(f'v_cvt_pk_bf16_f32 v{t+2}, v{t}, v{t+1}')
        a(f'v_lshlrev_b32 v{t}, 16, v{t+2}')
        a(f'v_and_b32 v{t+1}, 0xffff0000, v{t+2}')
    a(f'v_mul_f32 v{t}, v{t}, v{u}')
    a(f'v_mul_f32 v{t+1}, v{t+1}, v{u+1}')
    a(f'v_cvt_pk_bf16_f32 v{out}, v{t}, v{t+1}')


def gen_gemm1():
    a = Asm()
    end = 'L_g1_end'
    prologue(a, 256, end)
    a('s_and_b32 s41, s2, 1'); a('s_lshl_b32 s41, s41, 3')
    a('s_lshr_b32 s42, s2, 3'); a('s_and_b32 s43, s42, 7'); a('s_add_u32 s41, s41, s43')
    a('s_and_b32 s43, s2, 7'); a('s_lshr_b32 s43, s43, 1'); a('s_lshl_b32 s43, s43, 2')
    a('s_lshr_b32 s42, s42, 3'); a('s_add_u32 s42, s42, s43')
    L_load = a.label('loader')
    a(f's_cmp_ge_u32 s{S_WAVE}, 4'); a(f's_cbranch_scc1 {L_load}')
    NST = G1_NST
    a(f's_and_b32 s44, s{S_WAVE}, 1')
    a(f's_lshr_b32 s45, s{S_WAVE}, 1')
    a('v_lshlrev_b32 v2, 4, v1')
    a('s_lshl_b32 s46, s44, 12')
    a('v_add_u32 v3, s46, v2')
    a('s_mul_i32 s46, s45, 3072')
    a('s_add_u32 s46, s46, 8192')
    a('v_add_u32 v4, s46, v2')
    ACC = 64
    for r in range(96):
        a(f'v_mov_b32 v{ACC+r}, 0')
    FR = [8, 28]
    def reads(fs, vx, vw, ks):
        b = FR[fs]
        for tp in range(2):
            a(f'ds_read_b128 v[{b+4*tp}:{b+4*tp+3}], v{vx} offset:{tp*2048 + ks*1024}')
        for ap in range(3):
            a(f'ds_read_b128 v[{b+8+4*ap}:{b+8+4*ap+3}], v{vw} offset:{ks*6144 + ap*1024}')
    def mmas(fs):
        b = FR[fs]
        for ap in range(3):
            for tp in range(2):
                c = ACC + 16*(2*ap + tp)
                a(f'v_mfma_f32_32x32x16_bf16 v[{c}:{c+15}], v[{b+8+4*ap}:{b+8+4*ap+3}], v[{b+4*tp}:{b+4*tp+3}], v[{c}:{c+15}]')
    a('v_mov_b32 v5, v3'); a('v_mov_b32 v6, v4')
    a('s_barrier')
    reads(0, 5, 6, 0)
    a('s_mov_b32 s47, 0')
    a('s_mov_b32 s48, 0')
    L = a.label('g1loop'); L_last = a.label('g1last')
    a.put(L)
    reads(1, 5, 6, 1)
    a('s_waitcnt lgkmcnt(5)')
    mmas(0)
    a(f's_add_u32 s48, s48, {G1_STAGE}')
    a(f's_cmp_eq_u32 s48, {NST*G1_STAGE}')
    a('s_cselect_b32 s48, 0, s48')
    a('v_add_u32 v5, s48, v3'); a('v_add_u32 v6, s48, v4')
    a('s_cmp_eq_u32 s47, 19'); a(f's_cbranch_scc1 {L_last}')
    a('s_waitcnt lgkmcnt(0)')
    reads(0, 5, 6, 0)
    mmas(1)
    a('s_add_u32 s47, s47, 1')
    a('s_waitcnt lgkmcnt(0)')
    a('s_barrier')
    a(f's_branch {L}')
    a.put(L_last)
    a('s_waitcnt lgkmcnt(0)')
    mmas(1)
    a('v_and_b32 v8, 15, v1')
    a('v_lshlrev_b32 v8, 4, v8')
    a('v_lshrrev_b32 v9, 5, v1')
    a('v_lshl_add_u32 v8, v9, 8, v8')
    a('v_bfe_u32 v9, v1, 4, 1')
    a('v_mul_u32_u24 v9, 49152, v9')
    a('v_add_u32 v8, v8, v9')
    a('s_lshl_b32 s49, s41, 2'); a('s_lshl_b32 s50, s44, 1'); a('s_add_u32 s49, s49, s50')
    a('s_mul_i32 s49, s49, 98304')
    a(f's_add_u32 s49, s49, {WS_H}')
    a('s_mul_i32 s50, s42, 6'); a('s_mul_i32 s51, s45, 3'); a('s_add_u32 s50, s50, s51')
    for ap in range(3):
        a(f's_add_u32 s51, s50, {ap}')
        a('s_and_b32 s52, s51, 1'); a('s_lshl_b32 s52, s52, 9')
        a('s_lshr_b32 s51, s51, 1'); a('s_lshl_b32 s51, s51, 10')
        a('s_add_u32 s51, s51, s52'); a('s_add_u32 s51, s51, s49')
        for tp in range(2):
            c = ACC + 16*(2*ap + tp)
            o = 12 + 4*((2*ap+tp) & 1)
            for pr in range(4):
                silu_mul(a, c + 2*pr, c + 8 + 2*pr, 20, o + pr)
            a(f's_add_u32 s52, s51, {tp*98304}')
            a(f'buffer_store_dwordx4 v[{o}:{o+3}], v8, s[{SRD_WS}:{SRD_WS+3}], s52 offen')
    a('s_waitcnt vmcnt(0)')
    a(f's_branch {end}')
    a.put(L_load)
    a(f's_sub_u32 s44, s{S_WAVE}, 4')
    a('v_lshlrev_b32 v2, 4, v1')
    for i in range(5):
        Lx = a.label('px'); Ld = a.label('pd')
        a('s_mul_i32 s45, s44, 5'); a(f's_add_u32 s45, s45, {i}')
        a(f's_lshl_b32 s{60+i}, s45, 10')
        a('s_cmp_ge_u32 s45, 8'); a(f's_cbranch_scc1 {Lx}')
        a('s_lshr_b32 s46, s45, 1'); a('s_lshl_b32 s47, s41, 2'); a('s_add_u32 s46, s46, s47')
        a('s_mul_i32 s46, s46, 40960')
        a('s_and_b32 s47, s45, 1'); a('s_lshl_b32 s47, s47, 10'); a('s_add_u32 s46, s46, s47')
        a(f's_add_u32 s{50+i}, s46, {WS_XNF}')
        a(f's_mov_b32 s{55+i}, 2048')
        a(f's_branch {Ld}')
        a.put(Lx)
        a('s_sub_u32 s46, s45, 8'); a('s_lshl_b32 s46, s46, 10')
        a('s_mul_i32 s47, s42, 245760'); a('s_add_u32 s46, s46, s47')
        a(f's_add_u32 s{50+i}, s46, {WS_W13}')
        a(f's_mov_b32 s{55+i}, 12288')
        a.put(Ld)
    def issue():
        for i in range(5):
            a(f's_add_u32 m0, s48, s{60+i}')
            a(f'buffer_load_dwordx4 v2, s[{SRD_WS}:{SRD_WS+3}], s{50+i} offen lds')
            a(f's_add_u32 s{50+i}, s{50+i}, s{55+i}')
        a(f's_add_u32 s48, s48, {G1_STAGE}')
        a(f's_cmp_eq_u32 s48, {NST*G1_STAGE}')
        a('s_cselect_b32 s48, 0, s48')
    a('s_mov_b32 s48, 0')
    for st in range(NST - 1):
        issue()
    a(f's_waitcnt vmcnt({(NST-3)*5})')
    a('s_barrier')
    for st in range(19):
        nxt = st + NST - 1
        if nxt < 20:
            issue()
        last_issued = min(nxt, 19)
        need = min(st + 2, 19)
        a(f's_waitcnt vmcnt({(last_issued - need)*5})')
        a('s_barrier')
    a.put(end)
    return kernel_wrap('gemm1_kernel', a.finish(), 160), NST * G1_STAGE


def gen_gemm2():
    a = Asm()
    end = 'L_g2_end'
    prologue(a, 256, end)
    a('s_and_b32 s41, s2, 3'); a('s_lshl_b32 s41, s41, 3')
    a('s_lshr_b32 s42, s2, 3'); a('s_and_b32 s43, s42, 7'); a('s_add_u32 s41, s41, s43')
    a('s_bfe_u32 s43, s2, 0x10002'); a('s_lshl_b32 s43, s43, 2')
    a('s_lshr_b32 s42, s42, 3'); a('s_add_u32 s42, s42, s43')
    RED = 10240
    L_main = a.label('g2main')
    a(f's_cmp_lt_u32 s{S_WAVE}, 4'); a(f's_cbranch_scc1 {L_main}')
    a('v_lshrrev_b32 v3, 3, v1'); a('v_lshlrev_b32 v3, 12, v3')
    a('v_and_b32 v4, 7, v1'); a('v_lshl_add_u32 v3, v4, 4, v3')
    a('s_mul_i32 s44, s42, 80'); a('s_lshl_b32 s44, s44, 12')
    a('s_lshl_b32 s45, s41, 7'); a('s_add_u32 s44, s44, s45'); a(f's_add_u32 s44, s44, {WS_Y}')
    a(f's_sub_u32 s45, s{S_WAVE}, 4')
    Ly = a.label('yl')
    a.put(Ly)
    a('s_lshl_b32 m0, s45, 10')
    a('s_lshl_b32 s46, s45, 15'); a('s_add_u32 s46, s46, s44')
    a(f'buffer_load_dwordx4 v3, s[{SRD_WS}:{SRD_WS+3}], s46 offen lds')
    a('s_add_u32 s45, s45, 4'); a('s_cmp_lt_u32 s45, 10'); a(f's_cbranch_scc1 {Ly}')
    a('s_waitcnt vmcnt(0)')
    a('s_barrier')
    a(f's_branch {end}')
    a.put(L_main)
    a('v_lshlrev_b32 v2, 4, v1')
    a(f's_mul_i32 s44, s{S_WAVE}, 12')
    a('s_lshl_b32 s45, s41, 2'); a('s_mul_i32 s45, s45, 48'); a('s_add_u32 s45, s45, s44'); a('s_lshl_b32 s45, s45, 10')
    a(f's_add_u32 s45, s45, {WS_H}')
    a('s_mul_i32 s46, s42, 48'); a('s_add_u32 s46, s46, s44'); a('s_mul_i32 s46, s46, 5120')
    a(f's_add_u32 s46, s46, {WS_W2F}')
    for tq in range(1, 4):
        a(f's_add_u32 s{50+tq}, s45, {tq*49152}')
    a('s_mov_b32 s50, s45')
    ACC = 8
    for r in range(80):
        a(f'v_mov_b32 v{ACC+r}, 0')
    NB = 4
    FB = 88
    def loads(st):
        b = FB + 36*(st % NB)
        for tq in range(4):
            a(f'buffer_load_dwordx4 v[{b+4*tq}:{b+4*tq+3}], v2, s[{SRD_WS}:{SRD_WS+3}], s{50+tq} offen offset:{(st*1024) % 4096}')
        for dd in range(5):
            a(f'buffer_load_dwordx4 v[{b+16+4*dd}:{b+16+4*dd+3}], v2, s[{SRD_WS}:{SRD_WS+3}], s46 offen offset:{(dd*1024) % 4096}') if dd < 4 else \
                a(f'buffer_load_dwordx4 v[{b+16+4*dd}:{b+16+4*dd+3}], v2, s[{SRD_WS}:{SRD_WS+3}], s47 offen')
        a('s_add_u32 s46, s46, 5120')
        a('s_add_u32 s47, s46, 4096')
        if st % 4 == 3:
            for tq in range(4):
                a(f's_add_u32 s{50+tq}, s{50+tq}, 4096')
    a('s_add_u32 s47, s46, 4096')
    for st in range(NB - 1):
        loads(st)
    for st in range(12):
        if st + NB - 1 < 12:
            loads(st + NB - 1)
        rem = min(12, st + NB) - (st + 1)
        a(f's_waitcnt vmcnt({rem*9})')
        b = FB + 36*(st % NB)
        for dd in range(5):
            for tq in range(4):
                c = ACC + 4*(4*dd + tq)
                a(f'v_mfma_f32_16x16x32_bf16 v[{c}:{c+3}], v[{b+16+4*dd}:{b+16+4*dd+3}], v[{b+4*tq}:{b+4*tq+3}], v[{c}:{c+3}]')
    srd(a, 56, S_X, 2048*1280)
    srd(a, 60, S_OUT, 2048*1280)
    a('v_and_b32 v3, 15, v1'); a('v_mul_u32_u24 v4, 1280, v3')
    a('v_lshrrev_b32 v5, 4, v1'); a('v_lshl_add_u32 v4, v5, 3, v4')
    a('s_lshl_b32 s48, s41, 6'); a(f's_lshl_b32 s49, s{S_WAVE}, 4'); a('s_add_u32 s48, s48, s49')
    a('s_mul_i32 s48, s48, 1280'); a('s_mul_i32 s49, s42, 160'); a('s_add_u32 s48, s48, s49')
    XR = 88
    for dd in range(5):
        a(f'buffer_load_dwordx2 v[{XR+2*dd}:{XR+2*dd+1}], v4, s[56:59], s48 offen offset:{32*dd}')
    for tq in range(4):
        Ls = a.label('skip')
        a(f's_cmp_eq_u32 s{S_WAVE}, {tq}'); a(f's_cbranch_scc1 {Ls}')
        a(f's_sub_u32 s49, s{S_WAVE}, {tq+1}'); a('s_and_b32 s49, s49, 3')
        a('s_mul_i32 s49, s49, 5120')
        a(f's_add_u32 s49, s49, {RED + tq*15360}')
        a('v_add_u32 v6, s49, v2')
        for dd in range(5):
            c = ACC + 4*(4*dd + tq)
            a(f'ds_write_b128 v6, v[{c}:{c+3}] offset:{dd*1024}')
        a.put(Ls)
    a('s_waitcnt lgkmcnt(0)')
    a('s_barrier')
    OWN = 100
    for tq in range(4):
        Ls = a.label('own')
        a(f's_cmp_lg_u32 s{S_WAVE}, {tq}'); a(f's_cbranch_scc1 {Ls}')
        for dd in range(5):
            c = ACC + 4*(4*dd + tq)
            for r in range(4):
                a(f'v_mov_b32 v{OWN+4*dd+r}, v{c+r}')
        a.put(Ls)
    a(f's_mul_i32 s49, s{S_WAVE}, 15360'); a(f's_add_u32 s49, s49, {RED}')
    a('v_add_u32 v6, s49, v2')
    for sl in range(3):
        for dd in range(5):
            a(f'ds_read_b128 v[{120+20*sl+4*dd}:{123+20*sl+4*dd}], v6 offset:{sl*5120 + dd*1024}')
    a('v_lshrrev_b32 v7, 2, v3'); a('v_lshl_add_u32 v7, v5, 2, v7'); a('v_lshlrev_b32 v7, 7, v7')
    a('v_and_b32 v8, 3, v1'); a('v_lshl_add_u32 v7, v8, 3, v7')
    a(f's_lshl_b32 s49, s{S_WAVE}, 5'); a('v_add_u32 v7, s49, v7')
    YR = 180
    for dd in range(5):
        a(f'ds_read_b64_tr_b16 v[{YR+2*dd}:{YR+2*dd+1}], v7 offset:{dd*2048}')
    a('s_waitcnt vmcnt(0) lgkmcnt(0)')
    for dd in range(5):
        for r in range(4):
            o = OWN + 4*dd + r
            a(f'v_add_f32 v{o}, v{o}, v{120+4*dd+r}')
            a(f'v_add_f32 v{o}, v{o}, v{140+4*dd+r}')
            a(f'v_add_f32 v{o}, v{o}, v{160+4*dd+r}')
        o = OWN + 4*dd
        a(f'v_cvt_pk_bf16_f32 v10, v{o}, v{o+1}')
        a(f'v_cvt_pk_bf16_f32 v11, v{o+2}, v{o+3}')
        for (src, dst) in ((10, 12), (11, 14), (XR+2*dd, 16), (XR+2*dd+1, 18), (YR+2*dd, 20), (YR+2*dd+1, 22)):
            a(f'v_lshlrev_b32 v{dst}, 16, v{src}')
            a(f'v_and_b32 v{dst+1}, 0xffff0000, v{src}')
        for r in range(4):
            a(f'v_add_f32 v{16+r}, v{16+r}, v{20+r}')
        a('v_cvt_pk_bf16_f32 v24, v16, v17')
        a('v_cvt_pk_bf16_f32 v25, v18, v19')
        for (src, dst) in ((24, 16), (25, 18)):
            a(f'v_lshlrev_b32 v{dst}, 16, v{src}')
            a(f'v_and_b32 v{dst+1}, 0xffff0000, v{src}')
        for r in range(4):
            a(f'v_add_f32 v{16+r}, v{16+r}, v{12+r}')
        a(f'v_cvt_pk_bf16_f32 v{26+2*(dd&1)}, v16, v17')
        a(f'v_cvt_pk_bf16_f32 v{27+2*(dd&1)}, v18, v19')
        a(f'buffer_store_dwordx2 v[{26+2*(dd&1)}:{27+2*(dd&1)}], v4, s[60:63], s48 offen offset:{32*dd}')
    a('s_waitcnt vmcnt(0)')
    a.put(end)
    return kernel_wrap('gemm2_kernel', a.finish(), 232), RED + 61440


def header(launches):
    ref = open('cdna_kernels/' + NAME + '.s.ref').read().split('\n')
    head = [l for l in ref if l.startswith(';') and '@launch' not in l and 'Override launch' not in l and 'grid=ceil' not in l]
    out = []
    for l in ref:
        if not l.startswith(';'): break
        if '@launch' in l or 'Override launch' in l or 'grid=ceil' in l: continue
        out.append(l)
    for (k, g, b, lds) in launches:
        out.append(f'; @launch kernel={k} grid=({g},1,1) block=({b},1,1) lds={lds}')
    return '\n'.join(out) + '\n'


def build(which=('prep', 'gemm1', 'conv', 'gemm2')):
    gens = {'prep': gen_prep, 'gemm1': gen_gemm1, 'conv': gen_conv, 'gemm2': gen_gemm2}
    texts = []; descs = []; launches = []
    for k in which:
        (t, d), lds = gens[k]()
        texts.append(t); descs.append(d)
        launches.append((k + '_kernel', 256, 256 if k == 'conv' else 512, lds))
    s = header(launches)
    s += '.amdgcn_target "amdgcn-amd-amdhsa--gfx950"\n.text\n' + '\n'.join(texts)
    s += '.section .rodata,"a"\n' + ''.join('.p2align 6\n' + d for d in descs)
    return s


if __name__ == '__main__':
    out = sys.argv[1] if len(sys.argv) > 1 else 'cdna_kernels/' + NAME + '.s'
    open(out, 'w').write(build())
    print('written', out)
```

```python
import gen1 as G, sys
def with_empty(n):
    s = G.build()
    lines = s.split('\n')
    idx = max(i for i, l in enumerate(lines) if l.startswith('; @launch'))
    for k in range(n):
        lines.insert(idx + 1, '; @launch kernel=empty_kernel grid=(256,1,1) block=(64,1,1) lds=0')
    s = '\n'.join(lines)
    t, d = G.kernel_wrap('empty_kernel', '    s_nop 0', 8)
    s = s.replace('.section .rodata,"a"\n', t + '.section .rodata,"a"\n.p2align 6\n' + d)
    return s
open('v_e1.s', 'w').write(with_empty(1))
open('v_e4.s', 'w').write(with_empty(4))
open('v_e0.s', 'w').write(G.build())
```

```python
import sys, struct
from asmdsl import Asm

NAME = 'parallel_sum__ssm_conv_s4__glu_gated_swiglu__prompt'
KNAME = NAME + '_kernel'

WS_XNF = 0x0000000
WS_XNT = 0x0280000
WS_W13 = 0x0500000
WS_W2F = 0x08C0000
WS_H   = 0x0AA0000
WS_Y   = 0x10A0000
WS_F0  = 0x1320000
WS_F2  = WS_F0 + 256 * 128
WS_F3  = WS_F2 + 256 * 128
WS_EPOCH = WS_F3 + 256 * 128 + 4096
WS_PROF = 0x1400000
WS_SIZE = 0x1600000

S_X, S_ARE, S_AIM, S_BRE, S_BIM, S_CRE, S_CIM, S_LDT = 4, 6, 8, 10, 12, 14, 16, 18
S_DSK, S_BX, S_W1, S_W3, S_W2, S_OUT, S_DBG, S_WS = 20, 22, 24, 26, 28, 30, 32, 34
SRD_WS = 36
WS = f's[{SRD_WS}:{SRD_WS+3}]'
S_WAVE, S_TAG, S_M, S_NT, S_MT, S_NT2, S_CH0, S_NCH = 40, 41, 42, 43, 44, 45, 46, 47

PROF = False
SPIN_MAX = 1 << 16

TROW = 272
TBL = 59 * TROW
PART0 = 8 * TBL
LN_BASE = PART0 + 4096
LN_RS = 1296
KLIN = 150784
KSTR = 4352
CNT = 163712
LDS_SIZE = 163840
G1_NST = 7
G1_STAGE = 20480
COPY_O = (0, 1, 4, 5, 8, 8, 11, 12)
CP_STRIDE = 4352
CP_SIZE = 8 * CP_STRIDE
CV_U = CP_SIZE
CV_SIZE = CP_SIZE + 4608
RED = 0
YT = 61440


def fbits(x): return struct.unpack('<I', struct.pack('<f', x))[0]


def srd(a, dst, ptr, size):
    a(f's_mov_b32 s{dst}, s{ptr}')
    a(f's_and_b32 s{dst+1}, s{ptr+1}, 0xffff')
    a(f's_mov_b32 s{dst+2}, {size}')
    a(f's_mov_b32 s{dst+3}, 0x20000')


def stamp(a, i):
    if not PROF: return
    a('s_memrealtime s[92:93]')
    a('s_waitcnt lgkmcnt(0)')
    a(f's_mov_b32 s{70+i}, s92')


def prof_dump(a):
    if not PROF: return
    a(f's_lshl_b32 s92, s2, 3'); a(f's_add_u32 s92, s92, s{S_WAVE}')
    a('s_lshl_b32 s92, s92, 7'); a(f's_add_u32 s92, s92, {WS_PROF}')
    a('v_mov_b32 v250, 0')
    for i in range(22):
        a(f'v_mov_b32 v251, s{70+i}')
        a(f'buffer_store_dword v251, v250, {WS}, s92 offen offset:{4*i}')
    a('s_waitcnt vmcnt(0)')


def wave_sum(a, v):
    for ctl in ('quad_perm:[1,0,3,2]', 'quad_perm:[2,3,0,1]', 'row_half_mirror', 'row_mirror'):
        a(f'v_add_f32_dpp v{v}, v{v}, v{v} {ctl} row_mask:0xf bank_mask:0xf')
    a(f'v_add_f32_dpp v{v}, v{v}, v{v} row_bcast:15 row_mask:0xa bank_mask:0xf')
    a(f'v_add_f32_dpp v{v}, v{v}, v{v} row_bcast:31 row_mask:0xc bank_mask:0xf')


def rbf(a, v):
    a(f'v_cvt_pk_bf16_f32 v{v}, v{v}, v{v}')
    a(f'v_lshlrev_b32 v{v}, 16, v{v}')


def cmul(a, z, x, y):
    assert z != x and z != y
    a(f'v_pk_mul_f32 v[{z}:{z+1}], v[{x}:{x+1}], v[{y}:{y+1}] op_sel:[0,0] op_sel_hi:[0,1]')
    a(f'v_pk_fma_f32 v[{z}:{z+1}], v[{x}:{x+1}], v[{y}:{y+1}], v[{z}:{z+1}] op_sel:[1,1,0] op_sel_hi:[1,0,1] neg_lo:[0,1,0]')


def lds_signal_last(a, cnt_off, count, flag_soff_sreg, vt=2):
    L = a.label('sig')
    a(f'v_mov_b32 v{vt}, {CNT + cnt_off}')
    a(f'v_mov_b32 v{vt+1}, 1')
    a('s_mov_b64 s[58:59], exec')
    a('s_mov_b64 exec, 1')
    a(f'ds_add_rtn_u32 v{vt+1}, v{vt}, v{vt+1}')
    a('s_waitcnt lgkmcnt(0)')
    a(f'v_readfirstlane_b32 s56, v{vt+1}')
    a(f's_add_u32 s56, s56, 1')
    a(f's_cmp_lg_u32 s56, {count}')
    a(f's_cbranch_scc1 {L}')
    a(f'v_mov_b32 v{vt}, 0')
    a(f'v_mov_b32 v{vt+1}, s{S_TAG}')
    a(f'buffer_store_dword v{vt+1}, v{vt}, {WS}, s{flag_soff_sreg} offen sc1')
    a.put(L)
    a('s_mov_b64 exec, s[58:59]')


def lds_wait(a, off, value, vt=2):
    L = a.label('lw'); Ld = a.label('lwd')
    a(f'v_mov_b32 v{vt}, {CNT + off}')
    a('s_mov_b32 s57, 0')
    a.put(L)
    a(f'ds_read_b32 v{vt+1}, v{vt}')
    a('s_waitcnt lgkmcnt(0)')
    a(f'v_readfirstlane_b32 s56, v{vt+1}')
    a(f's_cmp_eq_u32 s56, {value}')
    a(f's_cbranch_scc1 {Ld}')
    a('s_add_u32 s57, s57, 1')
    a(f's_cmp_gt_u32 s57, {SPIN_MAX*4}')
    a(f's_cbranch_scc1 {Ld}')
    a('s_sleep 1')
    a(f's_branch {L}')
    a.put(Ld)


def lds_set(a, off, vt=2):
    a(f'v_mov_b32 v{vt}, {CNT + off}')
    a(f'v_mov_b32 v{vt+1}, 1')
    a(f'ds_write_b32 v{vt}, v{vt+1}')


def poll_flags(a, vaddr, nloads, stride_imm, vt, soff):
    L = a.label('poll'); Ld = a.label('polld')
    a('s_mov_b32 s57, 0')
    a.put(L)
    for i in range(nloads):
        if i == 0:
            a(f'buffer_load_dword v{vt}, v{vaddr}, {WS}, s{soff} offen sc1')
        else:
            a(f's_add_u32 s56, s{soff}, {i*stride_imm}')
            a(f'buffer_load_dword v{vt+i}, v{vaddr}, {WS}, s56 offen sc1')
    a('s_waitcnt vmcnt(0)')
    a(f'v_xor_b32 v{vt}, s{S_TAG}, v{vt}')
    for i in range(1, nloads):
        a(f'v_xor_b32 v{vt+i}, s{S_TAG}, v{vt+i}')
        a(f'v_or_b32 v{vt}, v{vt}, v{vt+i}')
    a(f'v_cmp_ne_u32 vcc, 0, v{vt}')
    a('s_add_u32 s57, s57, 1')
    a(f's_cmp_gt_u32 s57, {SPIN_MAX}')
    a(f's_cbranch_scc1 {Ld}')
    a('s_cmp_eq_u64 vcc, 0')
    a(f's_cbranch_scc0 {L}')
    a.put(Ld)


G_ROWS = [0, 1, 2, 3, 4, 5, 6, 7, 256, 258, 260, 262, 264, 512, 516, 520, 768, 772, 776,
          1024, 1032, 1280, 1288, 1536, 1544, 1792, 1800]
SLOT = {}
for _r, (_h0, _h1) in enumerate([(0, 4), (1, 5), (2, 6), (3, 7), (256, 260), (258, 262), (260, 264), (512, 768),
                                 (516, 772), (520, 776), (1024, 1536), (1032, 1544), (1280, 1792), (1288, 1800),
                                 (0, 0), (0, 0)]):
    SLOT[8 * (_r >> 2) + (_r & 3)] = _h0
    SLOT[8 * (_r >> 2) + 4 + (_r & 3)] = _h1

V_PAR = 100
V_GA, V_EA = 108, 109


def param_loads(a, unit_sreg):
    a(f's_mul_hi_u32 s60, s{unit_sreg}, 0x55555556')
    a('s_mul_i32 s61, s60, 3')
    a(f's_sub_u32 s61, s{unit_sreg}, s61')
    a('s_lshl_b32 s62, s60, 5')
    a(f's_add_u32 s62, s62, s{S_CH0}')
    a('s_min_u32 s62, s62, 639')
    a('s_mul_i32 s63, s62, 384')
    a('s_lshl_b32 s61, s61, 7')
    a('s_add_u32 s63, s63, s61')
    a('v_lshlrev_b32 v2, 1, v1')
    for i, ptr in enumerate((S_ARE, S_AIM, S_BRE, S_BIM, S_CRE, S_CIM)):
        srd(a, 48, ptr, 640 * 384)
        a(f'buffer_load_ushort v{V_PAR+i}, v2, s[48:51], s63 offen')
    srd(a, 48, S_LDT, 1280)
    a('s_lshl_b32 s62, s62, 1')
    a('v_mov_b32 v3, 0')
    a(f'buffer_load_ushort v{V_PAR+6}, v3, s[48:51], s62 offen')


def kgen_unit(a, mid_hook=None):
    P = V_PAR
    for i in range(7):
        a(f'v_lshlrev_b32 v{P+i}, 16, v{P+i}')
    a(f'v_mul_f32 v17, 0x3fb8aa3b, v{P+6}')
    a('s_mov_b32 s64, 0x3fb8aa3b')
    a(f'v_fma_f32 v18, v{P+6}, s64, -v17')
    a('s_mov_b32 s64, 0x32a57060')
    a(f'v_fma_f32 v18, v{P+6}, s64, v18')
    a('v_exp_f32 v17, v17')
    a('v_mul_f32 v18, 0x3f317218, v18')
    a('v_fma_f32 v17, v17, v18, v17')
    rbf(a, 17)
    a(f'v_mul_f32 v10, v{P}, v17')
    a(f'v_mul_f32 v11, v{P+1}, v17')
    a(f'v_mul_f32 v12, v{P+2}, v17')
    a(f'v_mul_f32 v13, v{P+3}, v17')
    a(f'v_mov_b32 v14, v{P+4}')
    a(f'v_mov_b32 v15, v{P+5}')
    G = 30
    cmul(a, G, 14, 12)
    a('v_mul_f32 v10, 0x3fb8aa3b, v10')
    a('v_mul_f32 v11, 0x3e22f983, v11')
    W1, W8, W256 = 18, 20, 22
    for (dst, tau) in ((W8, 8.0), (W1, 1.0), (W256, 256.0)):
        a(f'v_mul_f32 v24, {fbits(tau):#x}, v10')
        a(f'v_mul_f32 v25, {fbits(tau):#x}, v11')
        a('v_exp_f32 v24, v24')
        a('v_fract_f32 v25, v25')
        a('v_cos_f32 v26, v25')
        a('v_sin_f32 v27, v25')
        a(f'v_mul_f32 v{dst}, v24, v26')
        a(f'v_mul_f32 v{dst+1}, v24, v27')
    a('s_mov_b32 m0, s63')
    tmpi = [0]
    def put_row(row, z, neg):
        t = 4 + (tmpi[0] & 3); tmpi[0] += 1
        a(f'v_cvt_pk_bf16_f32 v{t}, v{z}, {"-" if neg else ""}v{z+1}')
        a(f'ds_write_addtid_b32 v{t} offset:{row*TROW}')
    a('v_mov_b32 v4, 0x00003f80')
    a('ds_write_addtid_b32 v4 offset:0')
    tmpi[0] = 1
    put_row(1, W8, False)
    e0, e1 = 24, 26
    cmul(a, e0, W8, W8); put_row(2, e0, False)
    cur, nxt = e0, e1
    gq = []
    grow = {R: 32 + i for i, R in enumerate(G_ROWS)}
    gq.append(lambda: put_row(grow[0], G, True))
    for r in range(1, 9):
        def f(r=r):
            cmul(a, G + 2*r, G + 2*(r-1), W1)
            if r < 8: put_row(grow[r], G + 2*r, True)
        gq.append(f)
    W512, W768, W1024, W1280, W1536, W1792 = 50, 52, 54, 56, 58, 60
    gq.append(lambda: cmul(a, W512, W256, W256))
    gq.append(lambda: cmul(a, W768, W512, W256))
    gq.append(lambda: cmul(a, W1024, W512, W512))
    gq.append(lambda: cmul(a, W1280, W1024, W256))
    gq.append(lambda: cmul(a, W1536, W1024, W512))
    gq.append(lambda: cmul(a, W1792, W1536, W256))
    mult = {256: W256, 512: W512, 768: W768, 1024: W1024, 1280: W1280, 1536: W1536, 1792: W1792}
    gt = [62, 28]
    k = 0
    for R in G_ROWS[8:]:
        base = R & ~255; r = R - base
        def f(R=R, base=base, r=r, t=gt[k & 1]):
            cmul(a, t, G + 2*r, mult[base]); put_row(grow[R], t, True)
        gq.append(f); k += 1
    for j in range(3, 32):
        cmul(a, nxt, cur, W8); put_row(j, nxt, False)
        cur, nxt = nxt, cur
        if gq: gq.pop(0)()
    while gq: gq.pop(0)()
    a(f'v_add_u32 v8, s63, v{V_EA}')
    a(f'v_add_u32 v9, s63, v{V_GA}')
    D = 64
    FR = 112
    a('s_waitcnt lgkmcnt(0)')
    for ks in range(8):
        a(f'ds_read_b128 v[{FR+8*ks}:{FR+8*ks+3}], v9 offset:{ks*32}')
        a(f'ds_read_b128 v[{FR+8*ks+4}:{FR+8*ks+7}], v8 offset:{ks*32}')
    for r in range(16):
        a(f'v_mov_b32 v{D+r}, 0')
    if mid_hook: mid_hook()
    for ks in range(8):
        a(f's_waitcnt lgkmcnt({14-2*ks})')
        a(f'v_mfma_f32_32x32x16_bf16 v[{D}:{D+15}], v[{FR+8*ks}:{FR+8*ks+3}], v[{FR+8*ks+4}:{FR+8*ks+7}], v[{D}:{D+15}]')


def gen():
    a = Asm()
    end = 'L_end'
    a('s_cmp_ge_u32 s2, 256')
    a(f's_cbranch_scc1 {end}')
    a('s_load_dwordx16 s[4:19], s[0:1], 0')
    a('s_load_dwordx16 s[20:35], s[0:1], 64')
    a('v_and_b32 v1, 63, v0')
    a('v_lshrrev_b32 v2, 6, v0')
    a(f'v_readfirstlane_b32 s{S_WAVE}, v2')
    if PROF:
        for i in range(70, 92): a(f's_mov_b32 s{i}, 0')
    a('s_and_b32 s56, s2, 7')
    a('s_lshr_b32 s57, s2, 3')
    a('s_and_b32 s58, s56, 1'); a('s_lshl_b32 s58, s58, 3'); a('s_and_b32 s59, s57, 7')
    a(f's_add_u32 s{S_M}, s58, s59')
    a('s_lshr_b32 s58, s56, 1'); a('s_lshl_b32 s58, s58, 2'); a('s_lshr_b32 s59, s57, 3')
    a(f's_add_u32 s{S_NT}, s58, s59')
    a('s_and_b32 s58, s56, 3'); a('s_lshl_b32 s58, s58, 3'); a('s_and_b32 s59, s57, 7')
    a(f's_add_u32 s{S_MT}, s58, s59')
    a('s_lshr_b32 s58, s56, 2'); a('s_lshl_b32 s58, s58, 2'); a('s_lshr_b32 s59, s57, 3')
    a(f's_add_u32 s{S_NT2}, s58, s59')
    a('s_mul_i32 s58, s56, 80')
    a(f's_add_u32 s{S_CH0}, s58, s57')
    a('s_cmp_lt_u32 s57, 16')
    a(f's_cselect_b32 s{S_NCH}, 3, 2')
    a('s_waitcnt lgkmcnt(0)')
    srd(a, SRD_WS, S_WS, WS_SIZE)
    stamp(a, 0)
    a('v_mov_b32 v2, 0')
    a(f's_mov_b32 s56, {WS_EPOCH}')
    a(f'buffer_load_dword v107, v2, {WS}, s56 offen sc1')
    param_loads(a, S_WAVE)
    a('s_lshl_b32 s56, s2, 3')
    a(f's_add_u32 s56, s56, s{S_WAVE}')
    a('s_mul_i32 s56, s56, 1280')
    srd(a, 52, S_X, 2048 * 1280)
    a('v_lshlrev_b32 v2, 2, v1')
    for i in range(5):
        a(f'buffer_load_dword v{10+i}, v2, s[52:55], s56 offen offset:{256*i}')
    a(f's_mul_i32 s65, s{S_WAVE}, {TBL}')
    a('s_mov_b32 s66, 0')
    L_nodma = a.label('nodma'); L_w2 = a.label('w2dma')
    a('s_cmp_ge_u32 s2, 240'); a(f's_cbranch_scc1 {L_nodma}')
    a(f's_cmp_ge_u32 s{S_WAVE}, 6'); a(f's_cbranch_scc1 {L_nodma}')
    a('v_lshrrev_b32 v3, 3, v1')
    a('v_and_b32 v4, 7, v1')
    a('v_lshlrev_b32 v4, 4, v4')
    a(f's_cmp_ge_u32 s{S_WAVE}, 4'); a(f's_cbranch_scc1 {L_w2}')
    a('s_mov_b32 s66, 1')
    a('s_lshl_b32 s67, s2, 2'); a(f's_add_u32 s67, s67, s{S_WAVE}')
    a('s_mul_hi_u32 s68, s67, 0x6666667')
    a('s_mul_i32 s69, s68, 40'); a('s_sub_u32 s69, s67, s69')
    a('v_mul_u32_u24 v3, 3072, v3'); a('v_add_u32 v3, v3, v4')
    a('s_mul_i32 s56, s69, 49152'); a('s_lshl_b32 s57, s68, 7'); a('s_add_u32 s56, s56, s57')
    for mi, ptr in enumerate((S_W1, S_W3)):
        srd(a, 48, ptr, 640 * 3072)
        for hh in range(2):
            a(f's_add_u32 m0, s65, {mi*2048 + hh*1024}')
            a(f's_add_u32 s57, s56, {hh*8*3072}')
            a('buffer_load_dwordx4 v3, s[48:51], s57 offen lds')
    a(f's_branch {L_nodma}')
    a.put(L_w2)
    a('s_mov_b32 s66, 2')
    a('s_lshl_b32 s67, s2, 1'); a(f's_add_u32 s67, s67, s{S_WAVE}'); a('s_sub_u32 s67, s67, 4')
    a('s_mul_hi_u32 s68, s67, 0x5555556')
    a('s_mul_i32 s69, s68, 48'); a('s_sub_u32 s69, s67, s69')
    a('v_mul_u32_u24 v3, 1280, v3'); a('v_add_u32 v3, v3, v4')
    a('s_mul_i32 s56, s69, 40960'); a('s_lshl_b32 s57, s68, 7'); a('s_add_u32 s56, s56, s57')
    srd(a, 48, S_W2, 1536 * 1280)
    for i in range(4):
        a(f's_add_u32 m0, s65, {i*1024}')
        a(f's_add_u32 s57, s56, {i*8*1280}')
        a('buffer_load_dwordx4 v3, s[48:51], s57 offen lds')
    a.put(L_nodma)
    a(f'v_mov_b32 v2, {CNT}'); a('v_mov_b32 v3, 0')
    a('v_lshl_add_u32 v2, v1, 2, v2')
    a('v_cmp_gt_u32 vcc, 8, v1')
    a('s_and_saveexec_b64 s[58:59], vcc')
    a('ds_write_b32 v2, v3')
    a('s_mov_b64 exec, s[58:59]')
    grow = {R: 32 + i for i, R in enumerate(G_ROWS)}
    tbl = [grow[SLOT[i]] - 32 for i in range(32)]
    words = [sum(tbl[4*i + b] << (8*b) for b in range(4)) for i in range(8)]
    a('v_and_b32 v2, 31, v1')
    a('v_lshrrev_b32 v3, 5, v1'); a('v_lshlrev_b32 v3, 4, v3')
    a(f'v_mul_u32_u24 v8, {TROW}, v2')
    a(f'v_add_u32 v{V_EA}, v8, v3')
    a('v_lshrrev_b32 v4, 2, v2')
    a(f'v_mov_b32 v5, {words[0]:#x}')
    for i in range(1, 8):
        a(f'v_mov_b32 v6, {words[i]:#x}')
        a(f'v_cmp_eq_u32 vcc, {i}, v4')
        a('v_cndmask_b32 v5, v5, v6, vcc')
    a('v_and_b32 v6, 3, v2'); a('v_lshlrev_b32 v6, 3, v6')
    a('v_lshrrev_b32 v5, v6, v5'); a('v_and_b32 v5, 0xff, v5'); a('v_add_u32 v5, 32, v5')
    a(f'v_mul_u32_u24 v9, {TROW}, v5')
    a(f'v_add_u32 v{V_GA}, v9, v3')
    Lw = a.label('w'); Lw2 = a.label('w')
    a('s_cmp_eq_u32 s66, 0'); a(f's_cbranch_scc0 {Lw}')
    a('s_waitcnt vmcnt(0)')
    a.put(Lw)
    a('s_waitcnt vmcnt(4)')
    stamp(a, 1)
    a(f'v_readfirstlane_b32 s{S_TAG}, v107')
    a(f's_mul_i32 s{S_TAG}, s{S_TAG}, 0x19660d')
    a(f's_add_u32 s{S_TAG}, s{S_TAG}, 0x3c6ef35f')
    F = 20
    for i in range(5):
        a(f'v_lshlrev_b32 v{F+2*i}, 16, v{10+i}')
        a(f'v_and_b32 v{F+2*i+1}, 0xffff0000, v{10+i}')
    a(f'v_add_f32 v5, v{F}, v{F+1}')
    for i in range(2, 10):
        a(f'v_add_f32 v5, v5, v{F+i}')
    wave_sum(a, 5)
    a('v_readlane_b32 s56, v5, 63')
    a('v_mov_b32 v6, s56')
    a('v_mul_f32 v6, 0x3acccccd, v6')
    a('v_mov_b32 v5, 0')
    for i in range(10):
        a(f'v_sub_f32 v7, v{F+i}, v6')
        a('v_fmac_f32 v5, v7, v7')
    wave_sum(a, 5)
    a('v_readlane_b32 s56, v5, 63')
    a('v_mov_b32 v7, s56')
    a('v_mul_f32 v7, 0x3acccccd, v7')
    rbf(a, 6); rbf(a, 7)
    a('v_add_f32 v7, 0x3727c5ac, v7')
    rbf(a, 7)
    a('v_sqrt_f32 v7, v7')
    rbf(a, 7)
    a('v_rcp_f32 v7, v7')
    for i in range(5):
        a(f'v_sub_f32 v{F+2*i}, v{F+2*i}, v6')
        a(f'v_sub_f32 v{F+2*i+1}, v{F+2*i+1}, v6')
        a(f'v_cvt_pk_bf16_f32 v8, v{F+2*i}, v{F+2*i+1}')
        a(f'v_lshlrev_b32 v{F+2*i}, 16, v8')
        a(f'v_and_b32 v{F+2*i+1}, 0xffff0000, v8')
        a(f'v_mul_f32 v{F+2*i}, v{F+2*i}, v7')
        a(f'v_mul_f32 v{F+2*i+1}, v{F+2*i+1}, v7')
        a(f'v_cvt_pk_bf16_f32 v{10+i}, v{F+2*i}, v{F+2*i+1}')
    a(f's_mul_i32 s56, s{S_WAVE}, {LN_RS}')
    a(f's_add_u32 s56, s56, {LN_BASE}')
    a('v_lshlrev_b32 v2, 2, v1')
    a('v_add_u32 v3, s56, v2')
    for i in range(5):
        a(f'ds_write_b32 v3, v{10+i} offset:{256*i}')
    a('v_and_b32 v3, 7, v1'); a('v_lshrrev_b32 v4, 3, v1')
    a(f'v_mul_u32_u24 v5, {LN_RS}, v3')
    a('v_lshl_add_u32 v5, v4, 4, v5')
    a(f'v_add_u32 v5, {LN_BASE}, v5')
    a('v_lshrrev_b32 v6, 1, v4'); a('v_lshlrev_b32 v6, 10, v6')
    a('v_and_b32 v7, 1, v4'); a('v_lshl_add_u32 v6, v7, 9, v6'); a('v_lshl_add_u32 v6, v3, 4, v6')
    a('s_lshr_b32 s60, s2, 2'); a('s_mul_i32 s60, s60, 40960')
    a('s_and_b32 s61, s2, 3'); a('s_lshl_b32 s61, s61, 7'); a('s_add_u32 s60, s60, s61')
    a(f's_add_u32 s60, s60, {WS_XNF}')
    a('v_and_b32 v8, 15, v1'); a('v_lshrrev_b32 v9, 2, v8'); a('v_sub_u32 v9, 7, v9')
    a(f'v_mul_u32_u24 v9, {LN_RS}, v9')
    a('v_and_b32 v8, 3, v1'); a('v_lshl_add_u32 v9, v8, 3, v9')
    a('v_lshrrev_b32 v8, 4, v1'); a('v_lshl_add_u32 v9, v8, 5, v9')
    a(f'v_add_u32 v9, {LN_BASE}, v9')
    a('v_lshlrev_b32 v15, 4, v1')
    a('s_mul_i32 s61, s2, 10240'); a(f's_add_u32 s61, s61, {WS_XNT}')
    a(f's_mov_b32 s62, s{S_WAVE}')
    a('s_waitcnt lgkmcnt(0)')
    a('s_barrier')
    stamp(a, 2)
    L_st = a.label('lnst')
    a.put(L_st)
    a('s_lshl_b32 s57, s62, 7')
    a('v_add_u32 v16, s57, v5'); a('v_add_u32 v17, s57, v9')
    a('ds_read_b128 v[20:23], v16')
    a('ds_read_b64_tr_b16 v[24:25], v17')
    a(f'v_subrev_u32 v17, {4*LN_RS}, v17')
    a('ds_read_b64_tr_b16 v[26:27], v17')
    a('s_lshl_b32 s57, s62, 12'); a('s_add_u32 s57, s57, s60')
    a('s_lshl_b32 s58, s62, 10'); a('s_add_u32 s58, s58, s61')
    a('s_waitcnt lgkmcnt(0)')
    a(f'buffer_store_dwordx4 v[20:23], v6, {WS}, s57 offen sc1')
    a(f'buffer_store_dwordx4 v[24:27], v15, {WS}, s58 offen sc1')
    a('s_add_u32 s62, s62, 8'); a('s_cmp_lt_u32 s62, 10'); a(f's_cbranch_scc1 {L_st}')
    L_rl_done = a.label('rldone'); L_rl2 = a.label('rl2')
    a('s_cmp_eq_u32 s66, 0'); a(f's_cbranch_scc1 {L_rl_done}')
    a('v_and_b32 v3, 15, v1'); a('v_lshrrev_b32 v4, 4, v1'); a('v_lshrrev_b32 v5, 2, v3')
    a('v_and_b32 v6, 3, v3'); a('v_lshlrev_b32 v6, 3, v6')
    a('s_cmp_eq_u32 s66, 2'); a(f's_cbranch_scc1 {L_rl2}')
    a('v_and_b32 v7, 1, v4'); a('v_lshlrev_b32 v7, 11, v7')
    a('v_lshrrev_b32 v8, 1, v4'); a('v_lshl_add_u32 v8, v8, 3, v5'); a('v_lshl_add_u32 v7, v8, 7, v7')
    a('v_add3_u32 v7, v7, v6, s65')
    a('s_waitcnt vmcnt(2)') if False else None
    Lx = a.label('x'); Ly = a.label('y')
    def wait_dma():
        l1 = a.label('wd'); l2 = a.label('wd')
        a(f's_cmp_lt_u32 s{S_WAVE}, 2'); a(f's_cbranch_scc1 {l1}')
        a('s_waitcnt vmcnt(2)'); a(f's_branch {l2}')
        a.put(l1); a('s_waitcnt vmcnt(4)'); a.put(l2)
    wait_dma()
    for ap in range(4):
        a(f'ds_read_b64_tr_b16 v[{28+4*ap}:{29+4*ap}], v7 offset:{32*ap}')
        a(f'ds_read_b64_tr_b16 v[{30+4*ap}:{31+4*ap}], v7 offset:{32*ap+512}')
    for ap in range(4):
        a('s_lshl_b32 s56, s68, 2'); a(f's_add_u32 s56, s56, {ap}')
        a('s_mul_hi_u32 s57, s56, 0x2aaaaaab'); a('s_mul_i32 s58, s57, 6'); a('s_sub_u32 s58, s56, s58')
        a('s_mul_i32 s57, s57, 40'); a('s_add_u32 s57, s57, s69'); a('s_mul_i32 s57, s57, 6')
        a('s_add_u32 s57, s57, s58'); a('s_lshl_b32 s57, s57, 10'); a(f's_add_u32 s57, s57, {WS_W13}')
        a(f's_waitcnt lgkmcnt({6-2*ap})')
        a(f'buffer_store_dwordx4 v[{28+4*ap}:{31+4*ap}], v15, {WS}, s57 offen sc1')
    a(f's_branch {L_rl_done}')
    a.put(L_rl2)
    a('v_lshrrev_b32 v7, 1, v4'); a('v_lshlrev_b32 v7, 4, v7'); a('v_and_b32 v8, 1, v4')
    a('v_lshl_add_u32 v7, v8, 2, v7'); a('v_add_u32 v7, v7, v5'); a('v_lshlrev_b32 v7, 7, v7')
    a('v_add3_u32 v7, v7, v6, s65')
    a('s_waitcnt vmcnt(2)')
    for bp in range(4):
        a(f'ds_read_b64_tr_b16 v[{28+4*bp}:{29+4*bp}], v7 offset:{32*bp}')
        a(f'ds_read_b64_tr_b16 v[{30+4*bp}:{31+4*bp}], v7 offset:{32*bp+1024}')
    for bp in range(4):
        a('s_lshl_b32 s56, s68, 2'); a(f's_add_u32 s56, s56, {bp}')
        a('s_mul_hi_u32 s57, s56, 0x33333334'); a('s_mul_i32 s58, s57, 5'); a('s_sub_u32 s58, s56, s58')
        a('s_mul_i32 s57, s57, 48'); a('s_add_u32 s57, s57, s69'); a('s_mul_i32 s57, s57, 5')
        a('s_add_u32 s57, s57, s58'); a('s_lshl_b32 s57, s57, 10'); a(f's_add_u32 s57, s57, {WS_W2F}')
        a(f's_waitcnt lgkmcnt({6-2*bp})')
        a(f'buffer_store_dwordx4 v[{28+4*bp}:{31+4*bp}], v15, {WS}, s57 offen sc1')
    a.put(L_rl_done)
    a('s_waitcnt lgkmcnt(0)')
    stamp(a, 3)
    a(f's_mul_i32 s67, s{S_NCH}, 3')
    a(f's_mov_b32 s66, s{S_WAVE}')
    a(f's_mul_i32 s63, s{S_WAVE}, {TBL}')
    a('s_lshl_b32 s65, s2, 7'); a(f's_add_u32 s65, s65, {WS_F0}')
    L_unit = a.label('unit'); L_unit_done = a.label('unitdone'); L_sig = a.label('sigdone'); L_nounit = a.label('nounit')
    a('s_mov_b32 s68, 0')
    a.put(L_unit)
    a('s_cmp_ge_u32 s66, s67'); a(f's_cbranch_scc1 {L_unit_done}')
    def hook():
        L = a.label('hk')
        a('s_cmp_eq_u32 s68, 1'); a(f's_cbranch_scc1 {L}')
        a('s_waitcnt vmcnt(0)')
        stamp(a, 4)
        lds_signal_last(a, 0, 8, 65)
        a('s_mov_b32 s68, 1')
        a.put(L)
    kgen_unit(a, hook)
    a('s_cmp_eq_u32 s66, 0')
    a(f's_cselect_b32 s64, {PART0}, s63')
    a('v_lshlrev_b32 v2, 4, v1'); a('v_add_u32 v2, s64, v2')
    for g in range(4):
        a(f'ds_write_b128 v2, v[{64+4*g}:{64+4*g+3}] offset:{1024*g}')
    a('s_add_u32 s66, s66, 8')
    a('s_cmp_ge_u32 s66, s67'); a(f's_cbranch_scc1 {L_unit_done}')
    param_loads(a, 66)
    a('s_mul_i32 s63, s40, %d' % TBL)
    a('s_waitcnt vmcnt(0)')
    a(f's_branch {L_unit}')
    a.put(L_unit_done)
    Lp = a.label('pub')
    a('s_cmp_eq_u32 s68, 1'); a(f's_cbranch_scc1 {Lp}')
    a('s_waitcnt vmcnt(0)')
    lds_signal_last(a, 0, 8, 65)
    a.put(Lp)
    stamp(a, 5)
    a('s_waitcnt lgkmcnt(0)')
    a('s_barrier')
    L_nosum = a.label('nosum')
    a(f's_cmp_ge_u32 s{S_WAVE}, s{S_NCH}'); a(f's_cbranch_scc1 {L_nosum}')
    a(f's_mul_i32 s63, s{S_WAVE}, 3')
    a('v_lshlrev_b32 v2, 4, v1')
    for jj in range(3):
        a(f's_add_u32 s64, s63, {jj}')
        a('s_and_b32 s65, s64, 7'); a(f's_mul_i32 s65, s65, {TBL}')
        a('s_cmp_eq_u32 s64, 0'); a(f's_cselect_b32 s65, {PART0}, s65')
        a('v_add_u32 v3, s65, v2')
        for g in range(4):
            a(f'ds_read_b128 v[{16+16*jj+4*g}:{19+16*jj+4*g}], v3 offset:{1024*g}')
    a('s_waitcnt lgkmcnt(0)')
    a.put(L_nosum)
    a('s_barrier')
    stamp(a, 6)
    L_load = a.label('loader')
    a(f's_cmp_ge_u32 s{S_WAVE}, 4'); a(f's_cbranch_scc1 {L_load}')
    L_nok = a.label('nok')
    a(f's_cmp_ge_u32 s{S_WAVE}, s{S_NCH}'); a(f's_cbranch_scc1 {L_nok}')
    D = 64
    for r in range(16):
        a(f'v_add_f32 v{D+r}, v{16+r}, v{32+r}')
        a(f'v_add_f32 v{D+r}, v{D+r}, v{48+r}')
    a(f's_mul_i32 s65, s{S_WAVE}, {KSTR}'); a(f's_add_u32 s65, s65, {KLIN}')
    a('v_and_b32 v2, 31, v1'); a('v_lshrrev_b32 v3, 5, v1')
    for r in range(4): a(f'v_mov_b32 v{4+r}, 0')
    a('v_mov_b32 v8, s65')
    a('s_mov_b64 s[58:59], exec'); a('s_mov_b64 exec, 3')
    a('v_lshl_add_u32 v9, v1, 4, v8')
    a('ds_write_b128 v9, v[4:7]')
    a('s_mov_b64 exec, s[58:59]')
    a('s_add_u32 s65, s65, 32')
    R = lambda r: D + r
    a('v_lshlrev_b32 v4, 4, v2'); a('v_lshl_add_u32 v4, v3, 3, v4'); a('v_add_u32 v4, s65, v4')
    a(f'v_cvt_pk_bf16_f32 v10, v{R(0)}, v{R(1)}'); a(f'v_cvt_pk_bf16_f32 v11, v{R(2)}, v{R(3)}')
    a('ds_write_b64 v4, v[10:11]')
    a(f'v_cvt_pk_bf16_f32 v12, v{R(4)}, v{R(4)}'); a(f'v_cvt_pk_bf16_f32 v13, v{R(5)}, v{R(6)}')
    a('ds_write_b64 v4, v[12:13] offset:512')
    a('v_lshlrev_b32 v5, 4, v2'); a('v_add_u32 v5, s65, v5')
    a('v_lshl_add_u32 v6, v3, 9, v5')
    a(f'v_cvt_pk_bf16_f32 v16, v{R(7)}, v{R(7)}'); a(f'v_cvt_pk_bf16_f32 v17, v{R(7)}, v{R(8)}')
    a(f'v_cvt_pk_bf16_f32 v18, v{R(8)}, v{R(8)}'); a(f'v_cvt_pk_bf16_f32 v19, v{R(9)}, v{R(9)}')
    a('ds_write_b128 v6, v[16:19] offset:1024')
    a('v_lshl_add_u32 v6, v3, 10, v5')
    a('v_and_b32 v7, 1, v2'); a('v_cmp_eq_u32 vcc, 1, v7')
    for bi, (ra, rb_) in enumerate(((10, 11), (12, 13))):
        t = 20 + 4*bi
        a(f'v_cndmask_b32 v8, v{R(ra)}, v{R(rb_)}, vcc')
        a(f'v_cvt_pk_bf16_f32 v{t}, v{R(ra)}, v{R(ra)}')
        a(f'v_mov_b32 v{t+1}, v{t}')
        a(f'v_cvt_pk_bf16_f32 v{t+2}, v8, v{R(rb_)}')
        a(f'v_cvt_pk_bf16_f32 v{t+3}, v{R(rb_)}, v{R(rb_)}')
        a(f'ds_write_b128 v6, v[{t}:{t+3}] offset:{2048 + 512*bi}')
    a('s_waitcnt lgkmcnt(0)')
    a.put(L_nok)
    NST = G1_NST
    a(f's_and_b32 s60, s{S_WAVE}, 1')
    a(f's_lshr_b32 s61, s{S_WAVE}, 1')
    a('v_lshlrev_b32 v2, 4, v1')
    a('s_lshl_b32 s56, s60, 12'); a('v_add_u32 v3, s56, v2')
    a('s_mul_i32 s56, s61, 3072'); a('s_add_u32 s56, s56, 8192'); a('v_add_u32 v4, s56, v2')
    ACC = 64
    for r in range(96):
        a(f'v_mov_b32 v{ACC+r}, 0')
    FR = [8, 28]
    def reads(fs, vx, vw, ks):
        b = FR[fs]
        for tp in range(2):
            a(f'ds_read_b128 v[{b+4*tp}:{b+4*tp+3}], v{vx} offset:{tp*2048 + ks*1024}')
        for ap in range(3):
            a(f'ds_read_b128 v[{b+8+4*ap}:{b+8+4*ap+3}], v{vw} offset:{ks*6144 + ap*1024}')
    def mmas(fs):
        b = FR[fs]
        for ap in range(3):
            for tp in range(2):
                c = ACC + 16*(2*ap + tp)
                a(f'v_mfma_f32_32x32x16_bf16 v[{c}:{c+15}], v[{b+8+4*ap}:{b+8+4*ap+3}], v[{b+4*tp}:{b+4*tp+3}], v[{c}:{c+15}]')
    a('v_mov_b32 v5, v3'); a('v_mov_b32 v6, v4')
    a('s_barrier')
    stamp(a, 7)
    reads(0, 5, 6, 0)
    a('s_mov_b32 s62, 0'); a('s_mov_b32 s63, 0')
    L = a.label('g1loop'); L_last = a.label('g1last')
    a.put(L)
    reads(1, 5, 6, 1)
    a('s_waitcnt lgkmcnt(5)')
    mmas(0)
    a(f's_add_u32 s63, s63, {G1_STAGE}'); a(f's_cmp_eq_u32 s63, {NST*G1_STAGE}'); a('s_cselect_b32 s63, 0, s63')
    a('v_add_u32 v5, s63, v3'); a('v_add_u32 v6, s63, v4')
    a('s_cmp_eq_u32 s62, 19'); a(f's_cbranch_scc1 {L_last}')
    a('s_waitcnt lgkmcnt(0)')
    reads(0, 5, 6, 0)
    mmas(1)
    a('s_add_u32 s62, s62, 1')
    a('s_waitcnt lgkmcnt(0)')
    a('s_barrier')
    a(f's_branch {L}')
    a.put(L_last)
    a('s_waitcnt lgkmcnt(0)')
    a('s_barrier')
    mmas(1)
    stamp(a, 8)
    a('v_and_b32 v8, 15, v1'); a('v_lshlrev_b32 v8, 4, v8')
    a('v_lshrrev_b32 v9, 5, v1'); a('v_lshl_add_u32 v8, v9, 8, v8')
    a('v_bfe_u32 v9, v1, 4, 1'); a('v_mul_u32_u24 v9, 49152, v9'); a('v_add_u32 v8, v8, v9')
    a(f's_lshl_b32 s64, s{S_M}, 2'); a('s_lshl_b32 s65, s60, 1'); a('s_add_u32 s64, s64, s65')
    a('s_mul_i32 s64, s64, 98304'); a(f's_add_u32 s64, s64, {WS_H}')
    a(f's_mul_i32 s65, s{S_NT}, 6'); a('s_mul_i32 s66, s61, 3'); a('s_add_u32 s65, s65, s66')
    a(f's_mov_b32 s68, {fbits(-1.4426950408889634):#x}'); a('s_mov_b32 s69, s68')
    for ap in range(3):
        a(f's_add_u32 s66, s65, {ap}')
        a('s_and_b32 s67, s66, 1'); a('s_lshl_b32 s67, s67, 9')
        a('s_lshr_b32 s66, s66, 1'); a('s_lshl_b32 s66, s66, 10')
        a('s_add_u32 s66, s66, s67'); a('s_add_u32 s66, s66, s64')
        for tp in range(2):
            c = ACC + 16*(2*ap + tp)
            o = 12 + 4*((2*ap+tp) & 1)
            for pr in range(4):
                g = c + 2*pr; u = c + 8 + 2*pr; t = 20 + 2*(pr & 1)
                a(f'v_pk_mul_f32 v[{t}:{t+1}], v[{g}:{g+1}], s[68:69]')
                a(f'v_exp_f32 v{t}, v{t}'); a(f'v_exp_f32 v{t+1}, v{t+1}')
                a(f'v_pk_mul_f32 v[{g}:{g+1}], v[{g}:{g+1}], v[{u}:{u+1}]')
                a(f'v_pk_add_f32 v[{t}:{t+1}], v[{t}:{t+1}], 1.0 op_sel_hi:[1,0]')
                a(f'v_rcp_f32 v{t}, v{t}'); a(f'v_rcp_f32 v{t+1}, v{t+1}')
                a(f'v_pk_mul_f32 v[{g}:{g+1}], v[{g}:{g+1}], v[{t}:{t+1}]')
                a(f'v_cvt_pk_bf16_f32 v{o+pr}, v{g}, v{g+1}')
            a(f's_add_u32 s67, s66, {tp*98304}')
            a(f'buffer_store_dwordx4 v[{o}:{o+3}], v8, {WS}, s67 offen sc1')
    stamp(a, 9)
    a('v_lshlrev_b32 v2, 4, v1')
    a(f's_mul_i32 s60, s{S_WAVE}, 12')
    a(f's_lshl_b32 s61, s{S_MT}, 2'); a('s_mul_i32 s61, s61, 48'); a('s_add_u32 s61, s61, s60'); a('s_lshl_b32 s61, s61, 10')
    a(f's_add_u32 s61, s61, {WS_H}')
    a(f's_mul_i32 s62, s{S_NT2}, 48'); a('s_add_u32 s62, s62, s60'); a('s_mul_i32 s62, s62, 5120')
    a(f's_add_u32 s62, s62, {WS_W2F}')
    ACC2 = 8
    NW, NH = 5, 4
    WB, HB = 88, 188
    seq = []
    for i in range(6): seq.append(('hs', i))
    def ld_w(st):
        b = WB + 20*(st % NW)
        for dd in range(5):
            off = st*5120 + dd*1024
            a(f's_add_u32 s56, s62, {off & ~4095}') if (dd == 0 or (off & 4095) == 0) else None
            a(f'buffer_load_dwordx4 v[{b+4*dd}:{b+4*dd+3}], v2, {WS}, s56 offen offset:{off & 4095} sc1')
            seq.append(('w', st))
    def ld_h(st):
        b = HB + 16*(st % NH)
        for tq in range(4):
            off = tq*49152 + st*1024
            a(f's_add_u32 s56, s61, {off & ~4095}')
            a(f'buffer_load_dwordx4 v[{b+4*tq}:{b+4*tq+3}], v2, {WS}, s56 offen offset:{off & 4095} sc1')
            seq.append(('h', st))
    lds_wait(a, 12, 1, vt=4)
    for st in range(NW): ld_w(st)
    a(f's_waitcnt vmcnt({NW*5})')
    a(f's_lshl_b32 s65, s{S_M}, 4'); a(f's_add_u32 s65, s65, s{S_NT}'); a('s_lshl_b32 s65, s65, 7'); a(f's_add_u32 s65, s65, {WS_F2}')
    lds_signal_last(a, 4, 4, 65, vt=4)
    stamp(a, 10)
    for r in range(80):
        a(f'v_mov_b32 v{ACC2+r}, 0')
    lds_wait(a, 16, 1, vt=4)
    stamp(a, 11)
    for st in range(NH): ld_h(st)
    for st in range(12):
        last = max(i for i, t in enumerate(seq) if t in (('w', st), ('h', st)))
        a(f's_waitcnt vmcnt({len(seq) - 1 - last})')
        wb = WB + 20*(st % NW); hb = HB + 16*(st % NH)
        for dd in range(5):
            for tq in range(4):
                c = ACC2 + 4*(4*dd + tq)
                a(f'v_mfma_f32_16x16x32_bf16 v[{c}:{c+3}], v[{wb+4*dd}:{wb+4*dd+3}], v[{hb+4*tq}:{hb+4*tq+3}], v[{c}:{c+3}]')
        if st + NH < 12: ld_h(st + NH)
        if st + NW < 12: ld_w(st + NW)
    stamp(a, 12)
    srd(a, 48, S_X, 2048*1280)
    srd(a, 52, S_OUT, 2048*1280)
    a('v_and_b32 v3, 15, v1'); a('v_mul_u32_u24 v4, 1280, v3')
    a('v_lshrrev_b32 v5, 4, v1'); a('v_lshl_add_u32 v4, v5, 3, v4')
    a(f's_lshl_b32 s60, s{S_MT}, 6'); a(f's_lshl_b32 s61, s{S_WAVE}, 4'); a('s_add_u32 s60, s60, s61')
    a('s_mul_i32 s60, s60, 1280'); a(f's_mul_i32 s61, s{S_NT2}, 160'); a('s_add_u32 s60, s60, s61')
    XR = 88
    for dd in range(5):
        a(f'buffer_load_dwordx2 v[{XR+2*dd}:{XR+2*dd+1}], v4, s[48:51], s60 offen offset:{32*dd}')
    lds_wait(a, 8, f's{S_NCH}', vt=6)
    for tq in range(4):
        Ls = a.label('skip')
        a(f's_cmp_eq_u32 s{S_WAVE}, {tq}'); a(f's_cbranch_scc1 {Ls}')
        a(f's_sub_u32 s61, s{S_WAVE}, {tq+1}'); a('s_and_b32 s61, s61, 3'); a('s_mul_i32 s61, s61, 5120')
        a(f's_add_u32 s61, s61, {RED + tq*15360}')
        a('v_add_u32 v6, s61, v2')
        for dd in range(5):
            c = ACC2 + 4*(4*dd + tq)
            a(f'ds_write_b128 v6, v[{c}:{c+3}] offset:{dd*1024}')
        a.put(Ls)
    OWN = 100
    for tq in range(4):
        Ls = a.label('own')
        a(f's_cmp_lg_u32 s{S_WAVE}, {tq}'); a(f's_cbranch_scc1 {Ls}')
        for dd in range(5):
            c = ACC2 + 4*(4*dd + tq)
            for r in range(4):
                a(f'v_mov_b32 v{OWN+4*dd+r}, v{c+r}')
        a.put(Ls)
    a(f's_mul_i32 s61, s{S_WAVE}, 15360'); a(f's_add_u32 s61, s61, {RED}')
    a('v_add_u32 v6, s61, v2')
    a('v_lshrrev_b32 v7, 2, v3'); a('v_lshl_add_u32 v7, v5, 2, v7'); a('v_lshlrev_b32 v7, 7, v7')
    a('v_and_b32 v8, 3, v1'); a('v_lshl_add_u32 v7, v8, 3, v7')
    a(f's_lshl_b32 s61, s{S_WAVE}, 5'); a(f's_add_u32 s61, s61, {YT}'); a('v_add_u32 v7, s61, v7')
    a('s_waitcnt lgkmcnt(0)')
    stamp(a, 13)
    a('s_barrier')
    stamp(a, 14)
    for sl in range(3):
        for dd in range(5):
            a(f'ds_read_b128 v[{120+20*sl+4*dd}:{123+20*sl+4*dd}], v6 offset:{sl*5120 + dd*1024}')
    YR = 180
    for dd in range(5):
        a(f'ds_read_b64_tr_b16 v[{YR+2*dd}:{YR+2*dd+1}], v7 offset:{dd*2048}')
    a('s_waitcnt vmcnt(0) lgkmcnt(0)')
    for dd in range(5):
        o = OWN + 4*dd
        for (src, dst) in ((XR+2*dd, 16), (XR+2*dd+1, 18), (YR+2*dd, 20), (YR+2*dd+1, 22)):
            a(f'v_lshlrev_b32 v{dst}, 16, v{src}')
            a(f'v_and_b32 v{dst+1}, 0xffff0000, v{src}')
        for r in range(4):
            a(f'v_add_f32 v{o+r}, v{o+r}, v{120+4*dd+r}')
            a(f'v_add_f32 v{16+r}, v{16+r}, v{20+r}')
            a(f'v_add_f32 v{o+r}, v{o+r}, v{140+4*dd+r}')
            a(f'v_add_f32 v{16+r}, v{16+r}, v{160+4*dd+r}')
        for r in range(4):
            a(f'v_add_f32 v{16+r}, v{16+r}, v{o+r}')
        a(f'v_cvt_pk_bf16_f32 v{26+2*(dd&1)}, v16, v17')
        a(f'v_cvt_pk_bf16_f32 v{27+2*(dd&1)}, v18, v19')
        a(f'buffer_store_dwordx2 v[{26+2*(dd&1)}:{27+2*(dd&1)}], v4, s[52:55], s60 offen offset:{32*dd}')
    stamp(a, 15)
    L_fin = a.label('fin')
    a(f's_branch {L_fin}')
    a.put(L_load)
    a(f's_sub_u32 s60, s{S_WAVE}, 4')
    a(f's_lshl_b32 s56, s{S_M}, 4')
    a(f's_mul_i32 s57, s{S_NT}, 3'); a('s_lshr_b32 s57, s57, 1'); a('s_mul_i32 s57, s57, 10')
    a('s_sub_u32 s57, s57, 16')
    a('v_add_u32 v3, s56, v1')
    a('v_add_u32 v4, s57, v1')
    a('v_cmp_gt_u32 vcc, 16, v1'); a('v_cndmask_b32 v3, v4, v3, vcc')
    a('v_mov_b32 v4, s56')
    a('v_cmp_gt_u32 vcc, 36, v1'); a('v_cndmask_b32 v3, v4, v3, vcc')
    a('v_min_u32 v3, 239, v3') if False else None
    a('v_lshlrev_b32 v3, 7, v3')
    a(f's_mov_b32 s61, {WS_F0}')
    a('v_lshlrev_b32 v2, 4, v1')
    SO, SI, SL = 48, 62, 52
    so = [48, 49, 50, 51, 52]; si = [53, 54, 55, 62, 63]; sl = [64, 65, 66, 67, 68]
    for i in range(5):
        Lx = a.label('px'); Ld = a.label('pd')
        a('s_mul_i32 s56, s60, 5'); a(f's_add_u32 s56, s56, {i}')
        a(f's_lshl_b32 s{sl[i]}, s56, 10')
        a('s_cmp_ge_u32 s56, 8'); a(f's_cbranch_scc1 {Lx}')
        a('s_lshr_b32 s57, s56, 1'); a(f's_lshl_b32 s58, s{S_M}, 2'); a('s_add_u32 s57, s57, s58')
        a('s_mul_i32 s57, s57, 40960')
        a('s_and_b32 s58, s56, 1'); a('s_lshl_b32 s58, s58, 10'); a('s_add_u32 s57, s57, s58')
        a(f's_add_u32 s{so[i]}, s57, {WS_XNF}'); a(f's_mov_b32 s{si[i]}, 2048')
        a(f's_branch {Ld}')
        a.put(Lx)
        a('s_sub_u32 s57, s56, 8'); a('s_lshl_b32 s57, s57, 10')
        a(f's_mul_i32 s58, s{S_NT}, 245760'); a('s_add_u32 s57, s57, s58')
        a(f's_add_u32 s{so[i]}, s57, {WS_W13}'); a(f's_mov_b32 s{si[i]}, 12288')
        a.put(Ld)
    poll_flags(a, 3, 1, 0, 4, 61)
    stamp(a, 7)
    def issue():
        for i in range(5):
            a(f's_add_u32 m0, s69, s{sl[i]}')
            a(f'buffer_load_dwordx4 v2, {WS}, s{so[i]} offen sc1 lds')
            a(f's_add_u32 s{so[i]}, s{so[i]}, s{si[i]}')
        a(f's_add_u32 s69, s69, {G1_STAGE}'); a(f's_cmp_eq_u32 s69, {NST*G1_STAGE}'); a('s_cselect_b32 s69, 0, s69')
    a('s_mov_b32 s69, 0')
    issued = 0
    for _ in range(3):
        issue(); issued += 1
    a(f's_waitcnt vmcnt({(issued - 2)*5})')
    a('s_barrier')
    st = 0
    while True:
        allowed = min(st + NST, 20)
        n = min(2, allowed - issued)
        if n <= 1 and issued + n - st == NST: break
        for _ in range(n): issue(); issued += 1
        a(f's_waitcnt vmcnt({(issued - min(st + 3, 20))*5})')
        a('s_barrier')
        st += 1
    st_end = 20 - NST + 1
    n_steady = st_end - st
    a(f's_mov_b32 s61, {n_steady}')
    Ls = a.label('steady')
    a.put(Ls)
    issue()
    a(f's_waitcnt vmcnt({(NST - 3)*5})')
    a('s_barrier')
    a('s_sub_u32 s61, s61, 1'); a('s_cmp_lg_u32 s61, 0'); a(f's_cbranch_scc1 {Ls}')
    issued += n_steady; st += n_steady
    assert issued == 20, issued
    while st < 19:
        a(f's_waitcnt vmcnt({max(0, (20 - min(st + 3, 20))*5)})')
        a('s_barrier')
        st += 1
    a('s_barrier')
    stamp(a, 8)
    L_sync = a.label('sync')
    a(f's_cmp_eq_u32 s{S_WAVE}, 7'); a(f's_cbranch_scc1 {L_sync}')
    a(f's_cmp_ge_u32 s60, s{S_NCH}'); a(f's_cbranch_scc1 {L_fin}')
    a('s_lshl_b32 s62, s60, 5'); a(f's_add_u32 s62, s62, s{S_CH0}')
    a(f's_mul_i32 s63, s60, {KSTR}'); a(f's_add_u32 s63, s63, {KLIN}')
    a(f's_mul_i32 s65, s60, {CV_SIZE}')
    a(f's_add_u32 s64, s65, {CV_U}')
    srd(a, 48, S_DSK, 1280)
    a('s_lshl_b32 s67, s62, 1'); a('v_mov_b32 v9, 0')
    a('buffer_load_ushort v9, v9, s[48:51], s67 offen')
    a('v_lshlrev_b32 v2, 4, v1')
    for r in range(4): a(f'v_mov_b32 v{4+r}, 0')
    a('v_add_u32 v8, s64, v2')
    a('s_mov_b64 s[58:59], exec'); a('s_mov_b32 exec_hi, 0')
    a('ds_write_b128 v8, v[4:7]')
    a('s_mov_b64 exec, s[58:59]')
    a('v_add_u32 v10, s63, v2'); a('v_add_u32 v11, s65, v2')
    a('s_mov_b32 s66, 0')
    Lb = a.label('build')
    a.put(Lb)
    a('ds_read_b128 v[12:15], v10')
    a('ds_read_b128 v[16:19], v10 offset:16')
    a('ds_read2_b32 v[28:29], v10 offset0:1 offset1:2')
    a('ds_read2_b32 v[30:31], v10 offset0:3 offset1:4')
    a('ds_read2_b32 v[32:33], v10 offset0:5 offset1:6')
    a('s_waitcnt lgkmcnt(3)')
    w = [12 + i for i in range(8)]
    a(f'ds_write_b128 v11, v[12:15] offset:{0*CP_STRIDE + 16*COPY_O[0]}')
    a(f'ds_write_b128 v11, v[14:17] offset:{4*CP_STRIDE + 16*COPY_O[4]}')
    for k in range(7):
        a(f'v_alignbyte_b32 v{20+k}, v{w[k+1]}, v{w[k]}, 2')
    a(f'ds_write_b128 v11, v[20:23] offset:{1*CP_STRIDE + 16*COPY_O[1]}')
    a(f'ds_write_b128 v11, v[22:25] offset:{5*CP_STRIDE + 16*COPY_O[5]}')
    for k in range(1, 7):
        a(f'v_alignbyte_b32 v{33+k}, v{w[k+1]}, v{w[k]}, 2')
    a(f'ds_write_b128 v11, v[34:37] offset:{3*CP_STRIDE + 16*COPY_O[3]}')
    a(f'ds_write_b128 v11, v[36:39] offset:{7*CP_STRIDE + 16*COPY_O[7]}')
    a('s_waitcnt lgkmcnt(6)')
    a(f'ds_write_b128 v11, v[28:31] offset:{2*CP_STRIDE + 16*COPY_O[2]}')
    a(f'ds_write_b128 v11, v[30:33] offset:{6*CP_STRIDE + 16*COPY_O[6]}')
    a('v_add_u32 v10, 1024, v10'); a('v_add_u32 v11, 1024, v11')
    a('s_add_u32 s66, s66, 1')
    a('s_cmp_eq_u32 s66, 4')
    a('s_cselect_b64 exec, 3, exec')
    a('s_cmp_lt_u32 s66, 5'); a(f's_cbranch_scc1 {Lb}')
    a('s_mov_b64 exec, -1')
    stamp(a, 9)
    lds_wait(a, 12, 1, vt=4)
    a('v_mul_u32_u24 v3, 10240, v1')
    a('s_lshl_b32 s66, s62, 4'); a(f's_add_u32 s66, s66, {WS_XNT}')
    for i in range(4):
        a(f's_add_u32 m0, s64, {512 + 1024*i}')
        a(f's_add_u32 s67, s66, {64*10240*i}')
        a(f'buffer_load_dwordx4 v3, {WS}, s67 offen sc1 lds')
    a('v_and_b32 v10, 15, v1'); a('v_lshrrev_b32 v11, 4, v1')
    a('v_add_u32 v12, 1, v10'); a('v_and_b32 v12, 7, v12')
    a(f'v_mul_u32_u24 v13, {CP_STRIDE}, v12')
    ow = sum(COPY_O[c] << (4*c) for c in range(8))
    a(f'v_mov_b32 v14, {ow:#x}'); a('v_lshlrev_b32 v15, 2, v12'); a('v_lshrrev_b32 v14, v15, v14'); a('v_and_b32 v14, 15, v14')
    a('v_subrev_u32 v15, 7, v10'); a('v_ashrrev_i32 v15, 3, v15'); a('v_add_u32 v14, v14, v15')
    a('v_lshrrev_b32 v15, 1, v11'); a('v_lshl_add_u32 v14, v15, 1, v14')
    a('v_and_b32 v15, 1, v11'); a('v_sub_u32 v14, v14, v15'); a('v_add_u32 v14, 2, v14')
    a('v_lshl_add_u32 v13, v14, 4, v13'); a('v_add_u32 v2, s65, v13')
    a('v_lshlrev_b32 v13, 5, v10'); a('v_lshrrev_b32 v15, 1, v11'); a('v_lshlrev_b32 v15, 5, v15')
    a('v_sub_u32 v13, v13, v15'); a('v_and_b32 v15, 1, v11'); a('v_lshl_add_u32 v13, v15, 4, v13')
    a('v_add_u32 v13, 512, v13'); a('v_add_u32 v3, s64, v13')
    ACCC = 64; BF = [96, 128]; AF = [160, 192]
    for r in range(32): a(f'v_mov_b32 v{ACCC+r}, 0')
    a('s_waitcnt vmcnt(0) lgkmcnt(0)')
    stamp(a, 10)
    a('v_lshlrev_b32 v9, 16, v9')
    def creads(s):
        r = []
        for j in range(8):
            r.append(f'ds_read_b128 v[{BF[s]+4*j}:{BF[s]+4*j+3}], v3 offset:{512*j}')
            r.append(f'ds_read_b128 v[{AF[s]+4*j}:{AF[s]+4*j+3}], v2 offset:{512*j}')
        return r
    def cstep(s, prefetch):
        rd = creads(s ^ 1) if prefetch else []
        if prefetch:
            a('v_add_u32 v2, 64, v2'); a('v_subrev_u32 v3, 64, v3')
        k = 0
        for q in range(8):
            for j in range(q, 8):
                a(f'v_mfma_f32_16x16x32_bf16 v[{ACCC+4*j}:{ACCC+4*j+3}], v[{AF[s]+4*q}:{AF[s]+4*q+3}], v[{BF[s]+4*(j-q)}:{BF[s]+4*(j-q)+3}], v[{ACCC+4*j}:{ACCC+4*j+3}]')
                k += 1
                if rd and k % 2 == 0: a(rd.pop(0))
        while rd: a(rd.pop(0))
        a('s_waitcnt lgkmcnt(0)')
    for x in creads(0): a(x)
    a('s_waitcnt lgkmcnt(0)')
    a('s_mov_b32 s66, 0')
    Lc = a.label('p0'); Lce = a.label('p0e')
    a.put(Lc)
    cstep(0, True)
    a('s_cmp_eq_u32 s66, 3'); a(f's_cbranch_scc1 {Lce}')
    cstep(1, True)
    a('s_add_u32 s66, s66, 1')
    a(f's_branch {Lc}')
    a.put(Lce)
    cstep(1, False)
    stamp(a, 11)
    a('v_lshlrev_b32 v13, 5, v10'); a('v_lshrrev_b32 v15, 1, v11'); a('v_lshl_add_u32 v13, v15, 4, v13')
    a('v_and_b32 v15, 1, v11'); a('v_sub_u32 v15, 1, v15'); a('v_lshl_add_u32 v13, v15, 3, v13')
    a('v_add_u32 v13, 512, v13'); a('v_add_u32 v13, s64, v13')
    for j in range(8):
        a(f'ds_read_b64 v[{96+2*j}:{96+2*j+1}], v13 offset:{512*j}')
    a('v_lshlrev_b32 v14, 5, v10'); a('v_and_b32 v15, 2, v11'); a('v_lshl_add_u32 v14, v15, 3, v14')
    a('v_and_b32 v15, 1, v11'); a('v_lshl_add_u32 v14, v15, 9, v14')
    a('s_lshl_b32 s66, s62, 12'); a(f's_add_u32 s66, s66, {WS_Y}')
    a('s_waitcnt lgkmcnt(0)')
    for jp in range(4):
        o = 28 + 4*(jp & 1)
        for h in range(2):
            j = 2*jp + h
            u0, u1 = 96 + 2*j, 96 + 2*j + 1
            a(f'v_and_b32 v16, 0xffff0000, v{u1}'); a(f'v_lshlrev_b32 v17, 16, v{u1}')
            a(f'v_and_b32 v18, 0xffff0000, v{u0}'); a(f'v_lshlrev_b32 v19, 16, v{u0}')
            for r in range(4):
                a(f'v_fma_f32 v{16+r}, v{16+r}, v9, v{ACCC+4*j+r}')
            a(f'v_cvt_pk_bf16_f32 v{o+2*h}, v16, v17')
            a(f'v_cvt_pk_bf16_f32 v{o+2*h+1}, v18, v19')
        a(f'v_permlane16_swap_b32 v{o}, v{o+2}')
        a(f'v_permlane16_swap_b32 v{o+1}, v{o+3}')
        a(f'buffer_store_dwordx4 v[{o}:{o+3}], v14, {WS}, s66 offen offset:{1024*jp} sc1')
    a('s_waitcnt vmcnt(0)')
    stamp(a, 12)
    a('s_and_b32 s65, s2, 7'); a('s_lshl_b32 s65, s65, 5'); a('s_lshr_b32 s66, s2, 3'); a('s_add_u32 s65, s65, s66')
    a('s_lshl_b32 s65, s65, 7'); a(f's_add_u32 s65, s65, {WS_F3}')
    lds_signal_last(a, 8, f's{S_NCH}', 65, vt=4)
    a(f's_branch {L_fin}')
    a.put(L_sync)
    a('v_lshlrev_b32 v3, 7, v1')
    a(f's_mov_b32 s61, {WS_F0}')
    poll_flags(a, 3, 4, 64*128, 4, 61)
    lds_set(a, 12, vt=8)
    Le = a.label('ep')
    a('s_cmp_eq_u32 s2, 0'); a(f's_cbranch_scc0 {Le}')
    a('v_mov_b32 v8, 0'); a(f'v_mov_b32 v9, s{S_TAG}'); a(f's_mov_b32 s56, {WS_EPOCH}')
    a('s_mov_b64 s[58:59], exec'); a('s_mov_b64 exec, 1')
    a(f'buffer_store_dword v9, v8, {WS}, s56 offen sc1')
    a('s_mov_b64 exec, s[58:59]')
    a.put(Le)
    stamp(a, 9)
    a('v_and_b32 v3, 15, v1'); a('v_lshlrev_b32 v3, 7, v3')
    a(f's_lshr_b32 s61, s{S_MT}, 1'); a('s_lshl_b32 s61, s61, 11'); a(f's_add_u32 s61, s61, {WS_F2}')
    poll_flags(a, 3, 1, 0, 4, 61)
    lds_set(a, 16, vt=8)
    stamp(a, 10)
    a('v_and_b32 v3, 31, v1'); a('v_lshlrev_b32 v3, 7, v3')
    a(f's_lshl_b32 s61, s{S_NT2}, 12'); a(f's_add_u32 s61, s61, {WS_F3}')
    poll_flags(a, 3, 1, 0, 4, 61)
    stamp(a, 11)
    lds_wait(a, 8, f's{S_NCH}', vt=6)
    a('v_lshrrev_b32 v3, 3, v1'); a('v_lshlrev_b32 v3, 12, v3')
    a('v_and_b32 v4, 7, v1'); a('v_lshl_add_u32 v3, v4, 4, v3')
    a(f's_mul_i32 s60, s{S_NT2}, 80'); a('s_lshl_b32 s60, s60, 12')
    a(f's_lshl_b32 s61, s{S_MT}, 7'); a('s_add_u32 s60, s60, s61'); a(f's_add_u32 s60, s60, {WS_Y}')
    for i in range(10):
        a(f's_mov_b32 m0, {YT + 1024*i}')
        a(f's_add_u32 s61, s60, {i << 15}')
        a(f'buffer_load_dwordx4 v3, {WS}, s61 offen sc1 lds')
    a('s_waitcnt vmcnt(0)')
    stamp(a, 12)
    a('s_barrier')
    a.put(L_fin)
    stamp(a, 16)
    prof_dump(a)
    a.put(end)
    body = a.finish()
    return body


def build():
    ref = open('cdna_kernels/' + NAME + '.s.ref').read().split('\n')
    out = []
    for l in ref:
        if not l.startswith(';'): break
        if '@launch' in l or 'Override launch' in l or 'grid=ceil' in l: continue
        out.append(l)
    out.append(f'; @launch grid=(256,1,1) block=(512,1,1) lds={LDS_SIZE}')
    s = '\n'.join(out) + '\n'
    s += f'''.amdgcn_target "amdgcn-amd-amdhsa--gfx950"
.text
.globl {KNAME}
.p2align 8
.type {KNAME},@function
{KNAME}:
{gen()}
    s_endpgm
.section .rodata,"a"
.p2align 6
.amdhsa_kernel {KNAME}
  .amdhsa_next_free_vgpr 256
  .amdhsa_next_free_sgpr 96
  .amdhsa_accum_offset 256
  .amdhsa_group_segment_fixed_size 0
  .amdhsa_kernarg_size 128
  .amdhsa_user_sgpr_count 2
  .amdhsa_user_sgpr_kernarg_segment_ptr 1
  .amdhsa_system_sgpr_workgroup_id_x 1
.end_amdhsa_kernel
'''
    return s


if __name__ == '__main__':
    if '--prof' in sys.argv:
        PROF = True; sys.argv.remove('--prof')
    out = sys.argv[1] if len(sys.argv) > 1 else 'cdna_kernels/' + NAME + '.s'
    open(out, 'w').write(build())
    print('written', out)
```

```python
import sys, struct
from asmdsl import Asm

NAME = 'parallel_sum__ssm_conv_s4__glu_gated_swiglu__prompt'
KNAME = NAME + '_kernel'

WS_XNF = 0x0000000
WS_XNT = 0x0280000
WS_W13 = 0x0500000
WS_W2F = 0x08C0000
WS_H   = 0x0AA0000
WS_Y   = 0x10A0000
WS_F0  = 0x1320000
WS_F2  = WS_F0 + 256 * 128
WS_F3  = WS_F2 + 256 * 128
WS_EPOCH = WS_F3 + 256 * 128 + 4096
WS_PROF = 0x1400000
WS_SIZE = 0x1600000

S_X, S_ARE, S_AIM, S_BRE, S_BIM, S_CRE, S_CIM, S_LDT = 4, 6, 8, 10, 12, 14, 16, 18
S_DSK, S_BX, S_W1, S_W3, S_W2, S_OUT, S_DBG, S_WS = 20, 22, 24, 26, 28, 30, 32, 34
SRD_WS = 36
WS = f's[{SRD_WS}:{SRD_WS+3}]'
S_WAVE, S_TAG, S_M, S_NT, S_MT, S_NT2, S_CH0, S_NCH = 40, 41, 42, 43, 44, 45, 46, 47

PROF = False
SPIN_MAX = 1 << 16

TROW = 272
TBL = 59 * TROW
PART0 = 8 * TBL
LN_BASE = PART0 + 4096
LN_RS = 1296
KLIN = 150784
KSTR = 4352
CNT = 163712
LDS_SIZE = 163840
G1_NST = 7
G1_STAGE = 20480
COPY_O = (0, 1, 4, 5, 8, 8, 11, 12)
CP_STRIDE = 4352
CP_SIZE = 8 * CP_STRIDE
CV_U = CP_SIZE
CV_SIZE = CP_SIZE + 4608
RED = 0
YT = 61440


def fbits(x): return struct.unpack('<I', struct.pack('<f', x))[0]


def srd(a, dst, ptr, size):
    a(f's_mov_b32 s{dst}, s{ptr}')
    a(f's_and_b32 s{dst+1}, s{ptr+1}, 0xffff')
    a(f's_mov_b32 s{dst+2}, {size}')
    a(f's_mov_b32 s{dst+3}, 0x20000')


def stamp(a, i):
    if not PROF: return
    a('s_memrealtime s[92:93]')
    a('s_waitcnt lgkmcnt(0)')
    a(f's_mov_b32 s{70+i}, s92')


DBGSUM = False
DBG_MAP = [0, 1, 2, 4, 6, 7, 8, 10, 11, 12, 14, 15]
def dbg_dump(a):
    srd(a, 48, S_DBG, 256)
    a('s_mov_b64 exec, 1')
    a('v_mov_b32 v250, 0')
    a('s_not_b32 s92, s70'); a('v_mov_b32 v251, s92')
    a('buffer_atomic_umax v251, v250, s[48:51], 0 offen')
    for k, i in enumerate(DBG_MAP):
        a(f'v_mov_b32 v251, s{70+i}')
        a(f'buffer_atomic_umax v251, v250, s[48:51], 0 offen offset:{4*(k+1)}')
    a('s_waitcnt vmcnt(0)')

def prof_dump(a):
    if not PROF: return
    if DBGSUM:
        dbg_dump(a); return
    a(f's_lshl_b32 s92, s2, 3'); a(f's_add_u32 s92, s92, s{S_WAVE}')
    a('s_lshl_b32 s92, s92, 7'); a(f's_add_u32 s92, s92, {WS_PROF}')
    a('v_mov_b32 v250, 0')
    for i in range(22):
        a(f'v_mov_b32 v251, s{70+i}')
        a(f'buffer_store_dword v251, v250, {WS}, s92 offen offset:{4*i}')
    a('s_waitcnt vmcnt(0)')


def wave_sum(a, v):
    for ctl in ('quad_perm:[1,0,3,2]', 'quad_perm:[2,3,0,1]', 'row_half_mirror', 'row_mirror'):
        a(f'v_add_f32_dpp v{v}, v{v}, v{v} {ctl} row_mask:0xf bank_mask:0xf')
    a(f'v_add_f32_dpp v{v}, v{v}, v{v} row_bcast:15 row_mask:0xa bank_mask:0xf')
    a(f'v_add_f32_dpp v{v}, v{v}, v{v} row_bcast:31 row_mask:0xc bank_mask:0xf')


def rbf(a, v):
    a(f'v_cvt_pk_bf16_f32 v{v}, v{v}, v{v}')
    a(f'v_lshlrev_b32 v{v}, 16, v{v}')


def cmul(a, z, x, y):
    assert z != x and z != y
    a(f'v_pk_mul_f32 v[{z}:{z+1}], v[{x}:{x+1}], v[{y}:{y+1}] op_sel:[0,0] op_sel_hi:[0,1]')
    a(f'v_pk_fma_f32 v[{z}:{z+1}], v[{x}:{x+1}], v[{y}:{y+1}], v[{z}:{z+1}] op_sel:[1,1,0] op_sel_hi:[1,0,1] neg_lo:[0,1,0]')


def lds_signal_last(a, cnt_off, count, flag_soff_sreg, vt=2):
    L = a.label('sig')
    a(f'v_mov_b32 v{vt}, {CNT + cnt_off}')
    a(f'v_mov_b32 v{vt+1}, 1')
    a('s_mov_b64 s[58:59], exec')
    a('s_mov_b64 exec, 1')
    a(f'ds_add_rtn_u32 v{vt+1}, v{vt}, v{vt+1}')
    a('s_waitcnt lgkmcnt(0)')
    a(f'v_readfirstlane_b32 s56, v{vt+1}')
    a(f's_add_u32 s56, s56, 1')
    a(f's_cmp_lg_u32 s56, {count}')
    a(f's_cbranch_scc1 {L}')
    a(f'v_mov_b32 v{vt}, 0')
    a(f'v_mov_b32 v{vt+1}, s{S_TAG}')
    a(f'buffer_store_dword v{vt+1}, v{vt}, {WS}, s{flag_soff_sreg} offen sc1')
    a.put(L)
    a('s_mov_b64 exec, s[58:59]')


def lds_wait(a, off, value, vt=2):
    L = a.label('lw'); Ld = a.label('lwd')
    a(f'v_mov_b32 v{vt}, {CNT + off}')
    a('s_mov_b32 s57, 0')
    a.put(L)
    a(f'ds_read_b32 v{vt+1}, v{vt}')
    a('s_waitcnt lgkmcnt(0)')
    a(f'v_readfirstlane_b32 s56, v{vt+1}')
    a(f's_cmp_eq_u32 s56, {value}')
    a(f's_cbranch_scc1 {Ld}')
    a('s_add_u32 s57, s57, 1')
    a(f's_cmp_gt_u32 s57, {SPIN_MAX*4}')
    a(f's_cbranch_scc1 {Ld}')
    a('s_sleep 1')
    a(f's_branch {L}')
    a.put(Ld)


def lds_set(a, off, vt=2):
    a(f'v_mov_b32 v{vt}, {CNT + off}')
    a(f'v_mov_b32 v{vt+1}, 1')
    a(f'ds_write_b32 v{vt}, v{vt+1}')


def poll_flags(a, vaddr, nloads, stride_imm, vt, soff):
    L = a.label('poll'); Ld = a.label('polld')
    a('s_mov_b32 s57, 0')
    a.put(L)
    for i in range(nloads):
        if i == 0:
            a(f'buffer_load_dword v{vt}, v{vaddr}, {WS}, s{soff} offen sc1')
        else:
            a(f's_add_u32 s56, s{soff}, {i*stride_imm}')
            a(f'buffer_load_dword v{vt+i}, v{vaddr}, {WS}, s56 offen sc1')
    a('s_waitcnt vmcnt(0)')
    a(f'v_xor_b32 v{vt}, s{S_TAG}, v{vt}')
    for i in range(1, nloads):
        a(f'v_xor_b32 v{vt+i}, s{S_TAG}, v{vt+i}')
        a(f'v_or_b32 v{vt}, v{vt}, v{vt+i}')
    a(f'v_cmp_ne_u32 vcc, 0, v{vt}')
    a('s_add_u32 s57, s57, 1')
    a(f's_cmp_gt_u32 s57, {SPIN_MAX}')
    a(f's_cbranch_scc1 {Ld}')
    a('s_cmp_eq_u64 vcc, 0')
    a(f's_cbranch_scc0 {L}')
    a.put(Ld)


G_ROWS = [0, 1, 2, 3, 4, 5, 6, 7, 256, 258, 260, 262, 264, 512, 516, 520, 768, 772, 776,
          1024, 1032, 1280, 1288, 1536, 1544, 1792, 1800]
SLOT = {}
for _r, (_h0, _h1) in enumerate([(0, 4), (1, 5), (2, 6), (3, 7), (256, 260), (258, 262), (260, 264), (512, 768),
                                 (516, 772), (520, 776), (1024, 1536), (1032, 1544), (1280, 1792), (1288, 1800),
                                 (0, 0), (0, 0)]):
    SLOT[8 * (_r >> 2) + (_r & 3)] = _h0
    SLOT[8 * (_r >> 2) + 4 + (_r & 3)] = _h1

V_PAR = 100
V_GA, V_EA = 108, 109


def param_loads(a, unit_sreg):
    a(f's_mul_hi_u32 s60, s{unit_sreg}, 0x55555556')
    a('s_mul_i32 s61, s60, 3')
    a(f's_sub_u32 s61, s{unit_sreg}, s61')
    a('s_lshl_b32 s62, s60, 5')
    a(f's_add_u32 s62, s62, s{S_CH0}')
    a('s_min_u32 s62, s62, 639')
    a('s_mul_i32 s63, s62, 384')
    a('s_lshl_b32 s61, s61, 7')
    a('s_add_u32 s63, s63, s61')
    a('v_lshlrev_b32 v2, 1, v1')
    for i, ptr in enumerate((S_ARE, S_AIM, S_BRE, S_BIM, S_CRE, S_CIM)):
        srd(a, 48, ptr, 640 * 384)
        a(f'buffer_load_ushort v{V_PAR+i}, v2, s[48:51], s63 offen')
    srd(a, 48, S_LDT, 1280)
    a('s_lshl_b32 s62, s62, 1')
    a('v_mov_b32 v3, 0')
    a(f'buffer_load_ushort v{V_PAR+6}, v3, s[48:51], s62 offen')


def kgen_unit(a, mid_hook=None):
    P = V_PAR
    for i in range(7):
        a(f'v_lshlrev_b32 v{P+i}, 16, v{P+i}')
    a(f'v_mul_f32 v17, 0x3fb8aa3b, v{P+6}')
    a('s_mov_b32 s64, 0x3fb8aa3b')
    a(f'v_fma_f32 v18, v{P+6}, s64, -v17')
    a('s_mov_b32 s64, 0x32a57060')
    a(f'v_fma_f32 v18, v{P+6}, s64, v18')
    a('v_exp_f32 v17, v17')
    a('v_mul_f32 v18, 0x3f317218, v18')
    a('v_fma_f32 v17, v17, v18, v17')
    rbf(a, 17)
    a(f'v_mul_f32 v10, v{P}, v17')
    a(f'v_mul_f32 v11, v{P+1}, v17')
    a(f'v_mul_f32 v12, v{P+2}, v17')
    a(f'v_mul_f32 v13, v{P+3}, v17')
    a(f'v_mov_b32 v14, v{P+4}')
    a(f'v_mov_b32 v15, v{P+5}')
    G = 30
    cmul(a, G, 14, 12)
    a('v_mul_f32 v10, 0x3fb8aa3b, v10')
    a('v_mul_f32 v11, 0x3e22f983, v11')
    W1, W8, W256 = 18, 20, 22
    for (dst, tau) in ((W8, 8.0), (W1, 1.0), (W256, 256.0)):
        a(f'v_mul_f32 v24, {fbits(tau):#x}, v10')
        a(f'v_mul_f32 v25, {fbits(tau):#x}, v11')
        a('v_exp_f32 v24, v24')
        a('v_fract_f32 v25, v25')
        a('v_cos_f32 v26, v25')
        a('v_sin_f32 v27, v25')
        a(f'v_mul_f32 v{dst}, v24, v26')
        a(f'v_mul_f32 v{dst+1}, v24, v27')
    a('s_mov_b32 m0, s63')
    tmpi = [0]
    def put_row(row, z, neg):
        t = 4 + (tmpi[0] & 3); tmpi[0] += 1
        a(f'v_cvt_pk_bf16_f32 v{t}, v{z}, {"-" if neg else ""}v{z+1}')
        a(f'ds_write_addtid_b32 v{t} offset:{row*TROW}')
    a('v_mov_b32 v4, 0x00003f80')
    a('ds_write_addtid_b32 v4 offset:0')
    tmpi[0] = 1
    put_row(1, W8, False)
    e0, e1 = 24, 26
    cmul(a, e0, W8, W8); put_row(2, e0, False)
    cur, nxt = e0, e1
    gq = []
    grow = {R: 32 + i for i, R in enumerate(G_ROWS)}
    gq.append(lambda: put_row(grow[0], G, True))
    for r in range(1, 9):
        def f(r=r):
            cmul(a, G + 2*r, G + 2*(r-1), W1)
            if r < 8: put_row(grow[r], G + 2*r, True)
        gq.append(f)
    W512, W768, W1024, W1280, W1536, W1792 = 50, 52, 54, 56, 58, 60
    gq.append(lambda: cmul(a, W512, W256, W256))
    gq.append(lambda: cmul(a, W768, W512, W256))
    gq.append(lambda: cmul(a, W1024, W512, W512))
    gq.append(lambda: cmul(a, W1280, W1024, W256))
    gq.append(lambda: cmul(a, W1536, W1024, W512))
    gq.append(lambda: cmul(a, W1792, W1536, W256))
    mult = {256: W256, 512: W512, 768: W768, 1024: W1024, 1280: W1280, 1536: W1536, 1792: W1792}
    gt = [62, 28]
    k = 0
    for R in G_ROWS[8:]:
        base = R & ~255; r = R - base
        def f(R=R, base=base, r=r, t=gt[k & 1]):
            cmul(a, t, G + 2*r, mult[base]); put_row(grow[R], t, True)
        gq.append(f); k += 1
    for j in range(3, 32):
        cmul(a, nxt, cur, W8); put_row(j, nxt, False)
        cur, nxt = nxt, cur
        if gq: gq.pop(0)()
    while gq: gq.pop(0)()
    a(f'v_add_u32 v8, s63, v{V_EA}')
    a(f'v_add_u32 v9, s63, v{V_GA}')
    D = 64
    FR = 112
    a('s_waitcnt lgkmcnt(0)')
    for ks in range(8):
        a(f'ds_read_b128 v[{FR+8*ks}:{FR+8*ks+3}], v9 offset:{ks*32}')
        a(f'ds_read_b128 v[{FR+8*ks+4}:{FR+8*ks+7}], v8 offset:{ks*32}')
    for r in range(16):
        a(f'v_mov_b32 v{D+r}, 0')
    if mid_hook: mid_hook()
    for ks in range(8):
        a(f's_waitcnt lgkmcnt({14-2*ks})')
        a(f'v_mfma_f32_32x32x16_bf16 v[{D}:{D+15}], v[{FR+8*ks}:{FR+8*ks+3}], v[{FR+8*ks+4}:{FR+8*ks+7}], v[{D}:{D+15}]')


def gen():
    a = Asm()
    end = 'L_end'
    a('s_cmp_ge_u32 s2, 256')
    a(f's_cbranch_scc1 {end}')
    a('s_load_dwordx16 s[4:19], s[0:1], 0')
    a('s_load_dwordx16 s[20:35], s[0:1], 64')
    a('v_and_b32 v1, 63, v0')
    a('v_lshrrev_b32 v2, 6, v0')
    a(f'v_readfirstlane_b32 s{S_WAVE}, v2')
    if PROF:
        for i in range(70, 92): a(f's_mov_b32 s{i}, 0')
    a('s_and_b32 s56, s2, 7')
    a('s_lshr_b32 s57, s2, 3')
    a('s_and_b32 s58, s56, 1'); a('s_lshl_b32 s58, s58, 3'); a('s_and_b32 s59, s57, 7')
    a(f's_add_u32 s{S_M}, s58, s59')
    a('s_lshr_b32 s58, s56, 1'); a('s_lshl_b32 s58, s58, 2'); a('s_lshr_b32 s59, s57, 3')
    a(f's_add_u32 s{S_NT}, s58, s59')
    a('s_and_b32 s58, s56, 3'); a('s_lshl_b32 s58, s58, 3'); a('s_and_b32 s59, s57, 7')
    a(f's_add_u32 s{S_MT}, s58, s59')
    a('s_lshr_b32 s58, s56, 2'); a('s_lshl_b32 s58, s58, 2'); a('s_lshr_b32 s59, s57, 3')
    a(f's_add_u32 s{S_NT2}, s58, s59')
    a('s_mul_i32 s58, s56, 80')
    a(f's_add_u32 s{S_CH0}, s58, s57')
    a('s_cmp_lt_u32 s57, 16')
    a(f's_cselect_b32 s{S_NCH}, 3, 2')
    a('s_waitcnt lgkmcnt(0)')
    srd(a, SRD_WS, S_WS, WS_SIZE)
    stamp(a, 0)
    a('v_mov_b32 v2, 0')
    a(f's_mov_b32 s56, {WS_EPOCH}')
    a(f'buffer_load_dword v107, v2, {WS}, s56 offen sc1')
    param_loads(a, S_WAVE)
    a('s_lshl_b32 s56, s2, 3')
    a(f's_add_u32 s56, s56, s{S_WAVE}')
    a('s_mul_i32 s56, s56, 1280')
    srd(a, 52, S_X, 2048 * 1280)
    a('v_lshlrev_b32 v2, 2, v1')
    for i in range(5):
        a(f'buffer_load_dword v{10+i}, v2, s[52:55], s56 offen offset:{256*i}')
    a(f's_mul_i32 s65, s{S_WAVE}, {TBL}')
    a('s_mov_b32 s66, 0')
    L_nodma = a.label('nodma'); L_w2 = a.label('w2dma')
    a('s_cmp_ge_u32 s2, 240'); a(f's_cbranch_scc1 {L_nodma}')
    a(f's_cmp_ge_u32 s{S_WAVE}, 6'); a(f's_cbranch_scc1 {L_nodma}')
    a('v_lshrrev_b32 v3, 3, v1')
    a('v_and_b32 v4, 7, v1')
    a('v_lshlrev_b32 v4, 4, v4')
    a(f's_cmp_ge_u32 s{S_WAVE}, 4'); a(f's_cbranch_scc1 {L_w2}')
    a('s_mov_b32 s66, 1')
    a('s_lshl_b32 s67, s2, 2'); a(f's_add_u32 s67, s67, s{S_WAVE}')
    a('s_mul_hi_u32 s68, s67, 0x6666667')
    a('s_mul_i32 s69, s68, 40'); a('s_sub_u32 s69, s67, s69')
    a('v_mul_u32_u24 v3, 3072, v3'); a('v_add_u32 v3, v3, v4')
    a('s_mul_i32 s56, s69, 49152'); a('s_lshl_b32 s57, s68, 7'); a('s_add_u32 s56, s56, s57')
    for mi, ptr in enumerate((S_W1, S_W3)):
        srd(a, 48, ptr, 640 * 3072)
        for hh in range(2):
            a(f's_add_u32 m0, s65, {mi*2048 + hh*1024}')
            a(f's_add_u32 s57, s56, {hh*8*3072}')
            a('buffer_load_dwordx4 v3, s[48:51], s57 offen lds')
    a(f's_branch {L_nodma}')
    a.put(L_w2)
    a('s_mov_b32 s66, 2')
    a('s_lshl_b32 s67, s2, 1'); a(f's_add_u32 s67, s67, s{S_WAVE}'); a('s_sub_u32 s67, s67, 4')
    a('s_mul_hi_u32 s68, s67, 0x5555556')
    a('s_mul_i32 s69, s68, 48'); a('s_sub_u32 s69, s67, s69')
    a('v_mul_u32_u24 v3, 1280, v3'); a('v_add_u32 v3, v3, v4')
    a('s_mul_i32 s56, s69, 40960'); a('s_lshl_b32 s57, s68, 7'); a('s_add_u32 s56, s56, s57')
    srd(a, 48, S_W2, 1536 * 1280)
    for i in range(4):
        a(f's_add_u32 m0, s65, {i*1024}')
        a(f's_add_u32 s57, s56, {i*8*1280}')
        a('buffer_load_dwordx4 v3, s[48:51], s57 offen lds')
    a.put(L_nodma)
    a(f'v_mov_b32 v2, {CNT}'); a('v_mov_b32 v3, 0')
    a('v_lshl_add_u32 v2, v1, 2, v2')
    a('v_cmp_gt_u32 vcc, 8, v1')
    a('s_and_saveexec_b64 s[58:59], vcc')
    a('ds_write_b32 v2, v3')
    a('s_mov_b64 exec, s[58:59]')
    grow = {R: 32 + i for i, R in enumerate(G_ROWS)}
    tbl = [grow[SLOT[i]] - 32 for i in range(32)]
    words = [sum(tbl[4*i + b] << (8*b) for b in range(4)) for i in range(8)]
    a('v_and_b32 v2, 31, v1')
    a('v_lshrrev_b32 v3, 5, v1'); a('v_lshlrev_b32 v3, 4, v3')
    a(f'v_mul_u32_u24 v8, {TROW}, v2')
    a(f'v_add_u32 v{V_EA}, v8, v3')
    a('v_lshrrev_b32 v4, 2, v2')
    a(f'v_mov_b32 v5, {words[0]:#x}')
    for i in range(1, 8):
        a(f'v_mov_b32 v6, {words[i]:#x}')
        a(f'v_cmp_eq_u32 vcc, {i}, v4')
        a('v_cndmask_b32 v5, v5, v6, vcc')
    a('v_and_b32 v6, 3, v2'); a('v_lshlrev_b32 v6, 3, v6')
    a('v_lshrrev_b32 v5, v6, v5'); a('v_and_b32 v5, 0xff, v5'); a('v_add_u32 v5, 32, v5')
    a(f'v_mul_u32_u24 v9, {TROW}, v5')
    a(f'v_add_u32 v{V_GA}, v9, v3')
    Lw = a.label('w'); Lw2 = a.label('w')
    a('s_cmp_eq_u32 s66, 0'); a(f's_cbranch_scc0 {Lw}')
    a('s_waitcnt vmcnt(0)')
    a.put(Lw)
    a('s_waitcnt vmcnt(4)')
    stamp(a, 1)
    a(f'v_readfirstlane_b32 s{S_TAG}, v107')
    a(f's_mul_i32 s{S_TAG}, s{S_TAG}, 0x19660d')
    a(f's_add_u32 s{S_TAG}, s{S_TAG}, 0x3c6ef35f')
    F = 20
    for i in range(5):
        a(f'v_lshlrev_b32 v{F+2*i}, 16, v{10+i}')
        a(f'v_and_b32 v{F+2*i+1}, 0xffff0000, v{10+i}')
    a(f'v_add_f32 v5, v{F}, v{F+1}')
    for i in range(2, 10):
        a(f'v_add_f32 v5, v5, v{F+i}')
    wave_sum(a, 5)
    a('v_readlane_b32 s56, v5, 63')
    a('v_mov_b32 v6, s56')
    a('v_mul_f32 v6, 0x3acccccd, v6')
    a('v_mov_b32 v5, 0')
    for i in range(10):
        a(f'v_sub_f32 v7, v{F+i}, v6')
        a('v_fmac_f32 v5, v7, v7')
    wave_sum(a, 5)
    a('v_readlane_b32 s56, v5, 63')
    a('v_mov_b32 v7, s56')
    a('v_mul_f32 v7, 0x3acccccd, v7')
    rbf(a, 6); rbf(a, 7)
    a('v_add_f32 v7, 0x3727c5ac, v7')
    rbf(a, 7)
    a('v_sqrt_f32 v7, v7')
    rbf(a, 7)
    a('v_rcp_f32 v7, v7')
    for i in range(5):
        a(f'v_sub_f32 v{F+2*i}, v{F+2*i}, v6')
        a(f'v_sub_f32 v{F+2*i+1}, v{F+2*i+1}, v6')
        a(f'v_cvt_pk_bf16_f32 v8, v{F+2*i}, v{F+2*i+1}')
        a(f'v_lshlrev_b32 v{F+2*i}, 16, v8')
        a(f'v_and_b32 v{F+2*i+1}, 0xffff0000, v8')
        a(f'v_mul_f32 v{F+2*i}, v{F+2*i}, v7')
        a(f'v_mul_f32 v{F+2*i+1}, v{F+2*i+1}, v7')
        a(f'v_cvt_pk_bf16_f32 v{10+i}, v{F+2*i}, v{F+2*i+1}')
    a(f's_mul_i32 s56, s{S_WAVE}, {LN_RS}')
    a(f's_add_u32 s56, s56, {LN_BASE}')
    a('v_lshlrev_b32 v2, 2, v1')
    a('v_add_u32 v3, s56, v2')
    for i in range(5):
        a(f'ds_write_b32 v3, v{10+i} offset:{256*i}')
    a('v_and_b32 v3, 7, v1'); a('v_lshrrev_b32 v4, 3, v1')
    a(f'v_mul_u32_u24 v5, {LN_RS}, v3')
    a('v_lshl_add_u32 v5, v4, 4, v5')
    a(f'v_add_u32 v5, {LN_BASE}, v5')
    a('v_lshrrev_b32 v6, 1, v4'); a('v_lshlrev_b32 v6, 10, v6')
    a('v_and_b32 v7, 1, v4'); a('v_lshl_add_u32 v6, v7, 9, v6'); a('v_lshl_add_u32 v6, v3, 4, v6')
    a('s_lshr_b32 s60, s2, 2'); a('s_mul_i32 s60, s60, 40960')
    a('s_and_b32 s61, s2, 3'); a('s_lshl_b32 s61, s61, 7'); a('s_add_u32 s60, s60, s61')
    a(f's_add_u32 s60, s60, {WS_XNF}')
    a('v_and_b32 v8, 15, v1'); a('v_lshrrev_b32 v9, 2, v8'); a('v_sub_u32 v9, 7, v9')
    a(f'v_mul_u32_u24 v9, {LN_RS}, v9')
    a('v_and_b32 v8, 3, v1'); a('v_lshl_add_u32 v9, v8, 3, v9')
    a('v_lshrrev_b32 v8, 4, v1'); a('v_lshl_add_u32 v9, v8, 5, v9')
    a(f'v_add_u32 v9, {LN_BASE}, v9')
    a('v_lshlrev_b32 v15, 4, v1')
    a('s_mul_i32 s61, s2, 10240'); a(f's_add_u32 s61, s61, {WS_XNT}')
    a(f's_mov_b32 s62, s{S_WAVE}')
    a('s_waitcnt lgkmcnt(0)')
    a('s_barrier')
    stamp(a, 2)
    L_st = a.label('lnst')
    a.put(L_st)
    a('s_lshl_b32 s57, s62, 7')
    a('v_add_u32 v16, s57, v5'); a('v_add_u32 v17, s57, v9')
    a('ds_read_b128 v[20:23], v16')
    a('ds_read_b64_tr_b16 v[24:25], v17')
    a(f'v_subrev_u32 v17, {4*LN_RS}, v17')
    a('ds_read_b64_tr_b16 v[26:27], v17')
    a('s_lshl_b32 s57, s62, 12'); a('s_add_u32 s57, s57, s60')
    a('s_lshl_b32 s58, s62, 10'); a('s_add_u32 s58, s58, s61')
    a('s_waitcnt lgkmcnt(0)')
    a(f'buffer_store_dwordx4 v[20:23], v6, {WS}, s57 offen sc1')
    a(f'buffer_store_dwordx4 v[24:27], v15, {WS}, s58 offen sc1')
    a('s_add_u32 s62, s62, 8'); a('s_cmp_lt_u32 s62, 10'); a(f's_cbranch_scc1 {L_st}')
    L_rl_done = a.label('rldone'); L_rl2 = a.label('rl2')
    a('s_cmp_eq_u32 s66, 0'); a(f's_cbranch_scc1 {L_rl_done}')
    a('v_and_b32 v3, 15, v1'); a('v_lshrrev_b32 v4, 4, v1'); a('v_lshrrev_b32 v5, 2, v3')
    a('v_and_b32 v6, 3, v3'); a('v_lshlrev_b32 v6, 3, v6')
    a('s_cmp_eq_u32 s66, 2'); a(f's_cbranch_scc1 {L_rl2}')
    a('v_and_b32 v7, 1, v4'); a('v_lshlrev_b32 v7, 11, v7')
    a('v_lshrrev_b32 v8, 1, v4'); a('v_lshl_add_u32 v8, v8, 3, v5'); a('v_lshl_add_u32 v7, v8, 7, v7')
    a('v_add3_u32 v7, v7, v6, s65')
    a('s_waitcnt vmcnt(2)') if False else None
    Lx = a.label('x'); Ly = a.label('y')
    def wait_dma():
        l1 = a.label('wd'); l2 = a.label('wd')
        a(f's_cmp_lt_u32 s{S_WAVE}, 2'); a(f's_cbranch_scc1 {l1}')
        a('s_waitcnt vmcnt(2)'); a(f's_branch {l2}')
        a.put(l1); a('s_waitcnt vmcnt(4)'); a.put(l2)
    wait_dma()
    for ap in range(4):
        a(f'ds_read_b64_tr_b16 v[{28+4*ap}:{29+4*ap}], v7 offset:{32*ap}')
        a(f'ds_read_b64_tr_b16 v[{30+4*ap}:{31+4*ap}], v7 offset:{32*ap+512}')
    for ap in range(4):
        a('s_lshl_b32 s56, s68, 2'); a(f's_add_u32 s56, s56, {ap}')
        a('s_mul_hi_u32 s57, s56, 0x2aaaaaab'); a('s_mul_i32 s58, s57, 6'); a('s_sub_u32 s58, s56, s58')
        a('s_mul_i32 s57, s57, 40'); a('s_add_u32 s57, s57, s69'); a('s_mul_i32 s57, s57, 6')
        a('s_add_u32 s57, s57, s58'); a('s_lshl_b32 s57, s57, 10'); a(f's_add_u32 s57, s57, {WS_W13}')
        a(f's_waitcnt lgkmcnt({6-2*ap})')
        a(f'buffer_store_dwordx4 v[{28+4*ap}:{31+4*ap}], v15, {WS}, s57 offen sc1')
    a(f's_branch {L_rl_done}')
    a.put(L_rl2)
    a('v_lshrrev_b32 v7, 1, v4'); a('v_lshlrev_b32 v7, 4, v7'); a('v_and_b32 v8, 1, v4')
    a('v_lshl_add_u32 v7, v8, 2, v7'); a('v_add_u32 v7, v7, v5'); a('v_lshlrev_b32 v7, 7, v7')
    a('v_add3_u32 v7, v7, v6, s65')
    a('s_waitcnt vmcnt(2)')
    for bp in range(4):
        a(f'ds_read_b64_tr_b16 v[{28+4*bp}:{29+4*bp}], v7 offset:{32*bp}')
        a(f'ds_read_b64_tr_b16 v[{30+4*bp}:{31+4*bp}], v7 offset:{32*bp+1024}')
    for bp in range(4):
        a('s_lshl_b32 s56, s68, 2'); a(f's_add_u32 s56, s56, {bp}')
        a('s_mul_hi_u32 s57, s56, 0x33333334'); a('s_mul_i32 s58, s57, 5'); a('s_sub_u32 s58, s56, s58')
        a('s_mul_i32 s57, s57, 48'); a('s_add_u32 s57, s57, s69'); a('s_mul_i32 s57, s57, 5')
        a('s_add_u32 s57, s57, s58'); a('s_lshl_b32 s57, s57, 10'); a(f's_add_u32 s57, s57, {WS_W2F}')
        a(f's_waitcnt lgkmcnt({6-2*bp})')
        a(f'buffer_store_dwordx4 v[{28+4*bp}:{31+4*bp}], v15, {WS}, s57 offen sc1')
    a.put(L_rl_done)
    a('s_waitcnt lgkmcnt(0)')
    stamp(a, 3)
    a(f's_mul_i32 s67, s{S_NCH}, 3')
    a(f's_mov_b32 s66, s{S_WAVE}')
    a(f's_mul_i32 s63, s{S_WAVE}, {TBL}')
    a('s_lshl_b32 s65, s2, 7'); a(f's_add_u32 s65, s65, {WS_F0}')
    L_unit = a.label('unit'); L_unit_done = a.label('unitdone'); L_sig = a.label('sigdone'); L_nounit = a.label('nounit')
    a('s_mov_b32 s68, 0')
    a.put(L_unit)
    a('s_cmp_ge_u32 s66, s67'); a(f's_cbranch_scc1 {L_unit_done}')
    def hook():
        L = a.label('hk')
        a('s_cmp_eq_u32 s68, 1'); a(f's_cbranch_scc1 {L}')
        a('s_waitcnt vmcnt(0)')
        stamp(a, 4)
        lds_signal_last(a, 0, 8, 65)
        a('s_mov_b32 s68, 1')
        a.put(L)
    kgen_unit(a, hook)
    a('s_cmp_eq_u32 s66, 0')
    a(f's_cselect_b32 s64, {PART0}, s63')
    a('v_lshlrev_b32 v2, 4, v1'); a('v_add_u32 v2, s64, v2')
    for g in range(4):
        a(f'ds_write_b128 v2, v[{64+4*g}:{64+4*g+3}] offset:{1024*g}')
    a('s_add_u32 s66, s66, 8')
    a('s_cmp_ge_u32 s66, s67'); a(f's_cbranch_scc1 {L_unit_done}')
    param_loads(a, 66)
    a('s_mul_i32 s63, s40, %d' % TBL)
    a('s_waitcnt vmcnt(0)')
    a(f's_branch {L_unit}')
    a.put(L_unit_done)
    Lp = a.label('pub')
    a('s_cmp_eq_u32 s68, 1'); a(f's_cbranch_scc1 {Lp}')
    a('s_waitcnt vmcnt(0)')
    lds_signal_last(a, 0, 8, 65)
    a.put(Lp)
    stamp(a, 5)
    a('s_waitcnt lgkmcnt(0)')
    a('s_barrier')
    L_nosum = a.label('nosum')
    a(f's_cmp_ge_u32 s{S_WAVE}, s{S_NCH}'); a(f's_cbranch_scc1 {L_nosum}')
    a(f's_mul_i32 s63, s{S_WAVE}, 3')
    a('v_lshlrev_b32 v2, 4, v1')
    for jj in range(3):
        a(f's_add_u32 s64, s63, {jj}')
        a('s_and_b32 s65, s64, 7'); a(f's_mul_i32 s65, s65, {TBL}')
        a('s_cmp_eq_u32 s64, 0'); a(f's_cselect_b32 s65, {PART0}, s65')
        a('v_add_u32 v3, s65, v2')
        for g in range(4):
            a(f'ds_read_b128 v[{16+16*jj+4*g}:{19+16*jj+4*g}], v3 offset:{1024*g}')
    a('s_waitcnt lgkmcnt(0)')
    a.put(L_nosum)
    a('s_barrier')
    stamp(a, 6)
    L_load = a.label('loader')
    a(f's_cmp_ge_u32 s{S_WAVE}, 4'); a(f's_cbranch_scc1 {L_load}')
    L_nok = a.label('nok')
    a(f's_cmp_ge_u32 s{S_WAVE}, s{S_NCH}'); a(f's_cbranch_scc1 {L_nok}')
    D = 64
    for r in range(16):
        a(f'v_add_f32 v{D+r}, v{16+r}, v{32+r}')
        a(f'v_add_f32 v{D+r}, v{D+r}, v{48+r}')
    a(f's_mul_i32 s65, s{S_WAVE}, {KSTR}'); a(f's_add_u32 s65, s65, {KLIN}')
    a('v_and_b32 v2, 31, v1'); a('v_lshrrev_b32 v3, 5, v1')
    for r in range(4): a(f'v_mov_b32 v{4+r}, 0')
    a('v_mov_b32 v8, s65')
    a('s_mov_b64 s[58:59], exec'); a('s_mov_b64 exec, 3')
    a('v_lshl_add_u32 v9, v1, 4, v8')
    a('ds_write_b128 v9, v[4:7]')
    a('s_mov_b64 exec, s[58:59]')
    a('s_add_u32 s65, s65, 32')
    R = lambda r: D + r
    a('v_lshlrev_b32 v4, 4, v2'); a('v_lshl_add_u32 v4, v3, 3, v4'); a('v_add_u32 v4, s65, v4')
    a(f'v_cvt_pk_bf16_f32 v10, v{R(0)}, v{R(1)}'); a(f'v_cvt_pk_bf16_f32 v11, v{R(2)}, v{R(3)}')
    a('ds_write_b64 v4, v[10:11]')
    a(f'v_cvt_pk_bf16_f32 v12, v{R(4)}, v{R(4)}'); a(f'v_cvt_pk_bf16_f32 v13, v{R(5)}, v{R(6)}')
    a('ds_write_b64 v4, v[12:13] offset:512')
    a('v_lshlrev_b32 v5, 4, v2'); a('v_add_u32 v5, s65, v5')
    a('v_lshl_add_u32 v6, v3, 9, v5')
    a(f'v_cvt_pk_bf16_f32 v16, v{R(7)}, v{R(7)}'); a(f'v_cvt_pk_bf16_f32 v17, v{R(7)}, v{R(8)}')
    a(f'v_cvt_pk_bf16_f32 v18, v{R(8)}, v{R(8)}'); a(f'v_cvt_pk_bf16_f32 v19, v{R(9)}, v{R(9)}')
    a('ds_write_b128 v6, v[16:19] offset:1024')
    a('v_lshl_add_u32 v6, v3, 10, v5')
    a('v_and_b32 v7, 1, v2'); a('v_cmp_eq_u32 vcc, 1, v7')
    for bi, (ra, rb_) in enumerate(((10, 11), (12, 13))):
        t = 20 + 4*bi
        a(f'v_cndmask_b32 v8, v{R(ra)}, v{R(rb_)}, vcc')
        a(f'v_cvt_pk_bf16_f32 v{t}, v{R(ra)}, v{R(ra)}')
        a(f'v_mov_b32 v{t+1}, v{t}')
        a(f'v_cvt_pk_bf16_f32 v{t+2}, v8, v{R(rb_)}')
        a(f'v_cvt_pk_bf16_f32 v{t+3}, v{R(rb_)}, v{R(rb_)}')
        a(f'ds_write_b128 v6, v[{t}:{t+3}] offset:{2048 + 512*bi}')
    a('s_waitcnt lgkmcnt(0)')
    a.put(L_nok)
    NST = G1_NST
    a(f's_and_b32 s60, s{S_WAVE}, 1')
    a(f's_lshr_b32 s61, s{S_WAVE}, 1')
    a('v_lshlrev_b32 v2, 4, v1')
    a('s_lshl_b32 s56, s60, 12'); a('v_add_u32 v3, s56, v2')
    a('s_mul_i32 s56, s61, 3072'); a('s_add_u32 s56, s56, 8192'); a('v_add_u32 v4, s56, v2')
    ACC = 64
    for r in range(96):
        a(f'v_mov_b32 v{ACC+r}, 0')
    FR = [8, 28]
    def reads(fs, vx, vw, ks):
        b = FR[fs]
        for tp in range(2):
            a(f'ds_read_b128 v[{b+4*tp}:{b+4*tp+3}], v{vx} offset:{tp*2048 + ks*1024}')
        for ap in range(3):
            a(f'ds_read_b128 v[{b+8+4*ap}:{b+8+4*ap+3}], v{vw} offset:{ks*6144 + ap*1024}')
    def mmas(fs):
        b = FR[fs]
        for ap in range(3):
            for tp in range(2):
                c = ACC + 16*(2*ap + tp)
                a(f'v_mfma_f32_32x32x16_bf16 v[{c}:{c+15}], v[{b+8+4*ap}:{b+8+4*ap+3}], v[{b+4*tp}:{b+4*tp+3}], v[{c}:{c+15}]')
    a('v_mov_b32 v5, v3'); a('v_mov_b32 v6, v4')
    a('s_barrier')
    stamp(a, 7)
    reads(0, 5, 6, 0)
    a('s_mov_b32 s62, 0'); a('s_mov_b32 s63, 0')
    L = a.label('g1loop'); L_last = a.label('g1last')
    a.put(L)
    reads(1, 5, 6, 1)
    a('s_waitcnt lgkmcnt(5)')
    mmas(0)
    a(f's_add_u32 s63, s63, {G1_STAGE}'); a(f's_cmp_eq_u32 s63, {NST*G1_STAGE}'); a('s_cselect_b32 s63, 0, s63')
    a('v_add_u32 v5, s63, v3'); a('v_add_u32 v6, s63, v4')
    a('s_cmp_eq_u32 s62, 19'); a(f's_cbranch_scc1 {L_last}')
    a('s_waitcnt lgkmcnt(0)')
    reads(0, 5, 6, 0)
    mmas(1)
    a('s_add_u32 s62, s62, 1')
    a('s_waitcnt lgkmcnt(0)')
    a('s_barrier')
    a(f's_branch {L}')
    a.put(L_last)
    a('s_waitcnt lgkmcnt(0)')
    a('s_barrier')
    mmas(1)
    stamp(a, 8)
    a('v_and_b32 v8, 15, v1'); a('v_lshlrev_b32 v8, 4, v8')
    a('v_lshrrev_b32 v9, 5, v1'); a('v_lshl_add_u32 v8, v9, 8, v8')
    a('v_bfe_u32 v9, v1, 4, 1'); a('v_mul_u32_u24 v9, 49152, v9'); a('v_add_u32 v8, v8, v9')
    a(f's_lshl_b32 s64, s{S_M}, 2'); a('s_lshl_b32 s65, s60, 1'); a('s_add_u32 s64, s64, s65')
    a('s_mul_i32 s64, s64, 98304'); a(f's_add_u32 s64, s64, {WS_H}')
    a(f's_mul_i32 s65, s{S_NT}, 6'); a('s_mul_i32 s66, s61, 3'); a('s_add_u32 s65, s65, s66')
    a(f's_mov_b32 s68, {fbits(-1.4426950408889634):#x}'); a('s_mov_b32 s69, s68')
    for ap in range(3):
        a(f's_add_u32 s66, s65, {ap}')
        a('s_and_b32 s67, s66, 1'); a('s_lshl_b32 s67, s67, 9')
        a('s_lshr_b32 s66, s66, 1'); a('s_lshl_b32 s66, s66, 10')
        a('s_add_u32 s66, s66, s67'); a('s_add_u32 s66, s66, s64')
        for tp in range(2):
            c = ACC + 16*(2*ap + tp)
            o = 12 + 4*((2*ap+tp) & 1)
            for pr in range(4):
                g = c + 2*pr; u = c + 8 + 2*pr; t = 20 + 2*(pr & 1)
                a(f'v_pk_mul_f32 v[{t}:{t+1}], v[{g}:{g+1}], s[68:69]')
                a(f'v_exp_f32 v{t}, v{t}'); a(f'v_exp_f32 v{t+1}, v{t+1}')
                a(f'v_pk_mul_f32 v[{g}:{g+1}], v[{g}:{g+1}], v[{u}:{u+1}]')
                a(f'v_pk_add_f32 v[{t}:{t+1}], v[{t}:{t+1}], 1.0 op_sel_hi:[1,0]')
                a(f'v_rcp_f32 v{t}, v{t}'); a(f'v_rcp_f32 v{t+1}, v{t+1}')
                a(f'v_pk_mul_f32 v[{g}:{g+1}], v[{g}:{g+1}], v[{t}:{t+1}]')
                a(f'v_cvt_pk_bf16_f32 v{o+pr}, v{g}, v{g+1}')
            a(f's_add_u32 s67, s66, {tp*98304}')
            a(f'buffer_store_dwordx4 v[{o}:{o+3}], v8, {WS}, s67 offen sc1')
    stamp(a, 9)
    a('v_lshlrev_b32 v2, 4, v1')
    a(f's_mul_i32 s60, s{S_WAVE}, 12')
    a(f's_lshl_b32 s61, s{S_MT}, 2'); a('s_mul_i32 s61, s61, 48'); a('s_add_u32 s61, s61, s60'); a('s_lshl_b32 s61, s61, 10')
    a(f's_add_u32 s61, s61, {WS_H}')
    a(f's_mul_i32 s62, s{S_NT2}, 48'); a('s_add_u32 s62, s62, s60'); a('s_mul_i32 s62, s62, 5120')
    a(f's_add_u32 s62, s62, {WS_W2F}')
    ACC2 = 8
    NW, NH = 5, 4
    WB, HB = 88, 188
    seq = []
    for i in range(6): seq.append(('hs', i))
    def ld_w(st):
        b = WB + 20*(st % NW)
        for dd in range(5):
            off = st*5120 + dd*1024
            a(f's_add_u32 s56, s62, {off & ~4095}') if (dd == 0 or (off & 4095) == 0) else None
            a(f'buffer_load_dwordx4 v[{b+4*dd}:{b+4*dd+3}], v2, {WS}, s56 offen offset:{off & 4095} sc1')
            seq.append(('w', st))
    def ld_h(st):
        b = HB + 16*(st % NH)
        for tq in range(4):
            off = tq*49152 + st*1024
            a(f's_add_u32 s56, s61, {off & ~4095}')
            a(f'buffer_load_dwordx4 v[{b+4*tq}:{b+4*tq+3}], v2, {WS}, s56 offen offset:{off & 4095} sc1')
            seq.append(('h', st))
    lds_wait(a, 12, 1, vt=4)
    for st in range(NW): ld_w(st)
    a(f's_waitcnt vmcnt({NW*5})')
    a(f's_lshl_b32 s65, s{S_M}, 4'); a(f's_add_u32 s65, s65, s{S_NT}'); a('s_lshl_b32 s65, s65, 7'); a(f's_add_u32 s65, s65, {WS_F2}')
    lds_signal_last(a, 4, 4, 65, vt=4)
    stamp(a, 10)
    for r in range(80):
        a(f'v_mov_b32 v{ACC2+r}, 0')
    lds_wait(a, 16, 1, vt=4)
    stamp(a, 11)
    for st in range(NH): ld_h(st)
    for st in range(12):
        last = max(i for i, t in enumerate(seq) if t in (('w', st), ('h', st)))
        a(f's_waitcnt vmcnt({len(seq) - 1 - last})')
        wb = WB + 20*(st % NW); hb = HB + 16*(st % NH)
        for dd in range(5):
            for tq in range(4):
                c = ACC2 + 4*(4*dd + tq)
                a(f'v_mfma_f32_16x16x32_bf16 v[{c}:{c+3}], v[{wb+4*dd}:{wb+4*dd+3}], v[{hb+4*tq}:{hb+4*tq+3}], v[{c}:{c+3}]')
        if st + NH < 12: ld_h(st + NH)
        if st + NW < 12: ld_w(st + NW)
    stamp(a, 12)
    srd(a, 48, S_X, 2048*1280)
    srd(a, 52, S_OUT, 2048*1280)
    a('v_and_b32 v3, 15, v1'); a('v_mul_u32_u24 v4, 1280, v3')
    a('v_lshrrev_b32 v5, 4, v1'); a('v_lshl_add_u32 v4, v5, 3, v4')
    a(f's_lshl_b32 s60, s{S_MT}, 6'); a(f's_lshl_b32 s61, s{S_WAVE}, 4'); a('s_add_u32 s60, s60, s61')
    a('s_mul_i32 s60, s60, 1280'); a(f's_mul_i32 s61, s{S_NT2}, 160'); a('s_add_u32 s60, s60, s61')
    XR = 88
    for dd in range(5):
        a(f'buffer_load_dwordx2 v[{XR+2*dd}:{XR+2*dd+1}], v4, s[48:51], s60 offen offset:{32*dd}')
    lds_wait(a, 8, f's{S_NCH}', vt=6)
    for tq in range(4):
        Ls = a.label('skip')
        a(f's_cmp_eq_u32 s{S_WAVE}, {tq}'); a(f's_cbranch_scc1 {Ls}')
        a(f's_sub_u32 s61, s{S_WAVE}, {tq+1}'); a('s_and_b32 s61, s61, 3'); a('s_mul_i32 s61, s61, 5120')
        a(f's_add_u32 s61, s61, {RED + tq*15360}')
        a('v_add_u32 v6, s61, v2')
        for dd in range(5):
            c = ACC2 + 4*(4*dd + tq)
            a(f'ds_write_b128 v6, v[{c}:{c+3}] offset:{dd*1024}')
        a.put(Ls)
    OWN = 100
    for tq in range(4):
        Ls = a.label('own')
        a(f's_cmp_lg_u32 s{S_WAVE}, {tq}'); a(f's_cbranch_scc1 {Ls}')
        for dd in range(5):
            c = ACC2 + 4*(4*dd + tq)
            for r in range(4):
                a(f'v_mov_b32 v{OWN+4*dd+r}, v{c+r}')
        a.put(Ls)
    a(f's_mul_i32 s61, s{S_WAVE}, 15360'); a(f's_add_u32 s61, s61, {RED}')
    a('v_add_u32 v6, s61, v2')
    a('v_lshrrev_b32 v7, 2, v3'); a('v_lshl_add_u32 v7, v5, 2, v7'); a('v_lshlrev_b32 v7, 7, v7')
    a('v_and_b32 v8, 3, v1'); a('v_lshl_add_u32 v7, v8, 3, v7')
    a(f's_lshl_b32 s61, s{S_WAVE}, 5'); a(f's_add_u32 s61, s61, {YT}'); a('v_add_u32 v7, s61, v7')
    a('s_waitcnt lgkmcnt(0)')
    stamp(a, 13)
    a('s_barrier')
    stamp(a, 14)
    for sl in range(3):
        for dd in range(5):
            a(f'ds_read_b128 v[{120+20*sl+4*dd}:{123+20*sl+4*dd}], v6 offset:{sl*5120 + dd*1024}')
    YR = 180
    for dd in range(5):
        a(f'ds_read_b64_tr_b16 v[{YR+2*dd}:{YR+2*dd+1}], v7 offset:{dd*2048}')
    a('s_waitcnt vmcnt(0) lgkmcnt(0)')
    for dd in range(5):
        o = OWN + 4*dd
        for (src, dst) in ((XR+2*dd, 16), (XR+2*dd+1, 18), (YR+2*dd, 20), (YR+2*dd+1, 22)):
            a(f'v_lshlrev_b32 v{dst}, 16, v{src}')
            a(f'v_and_b32 v{dst+1}, 0xffff0000, v{src}')
        for r in range(4):
            a(f'v_add_f32 v{o+r}, v{o+r}, v{120+4*dd+r}')
            a(f'v_add_f32 v{16+r}, v{16+r}, v{20+r}')
            a(f'v_add_f32 v{o+r}, v{o+r}, v{140+4*dd+r}')
            a(f'v_add_f32 v{16+r}, v{16+r}, v{160+4*dd+r}')
        for r in range(4):
            a(f'v_add_f32 v{16+r}, v{16+r}, v{o+r}')
        a(f'v_cvt_pk_bf16_f32 v{26+2*(dd&1)}, v16, v17')
        a(f'v_cvt_pk_bf16_f32 v{27+2*(dd&1)}, v18, v19')
        a(f'buffer_store_dwordx2 v[{26+2*(dd&1)}:{27+2*(dd&1)}], v4, s[52:55], s60 offen offset:{32*dd}')
    stamp(a, 15)
    L_fin = a.label('fin')
    a(f's_branch {L_fin}')
    a.put(L_load)
    a(f's_sub_u32 s60, s{S_WAVE}, 4')
    a(f's_lshl_b32 s56, s{S_M}, 4')
    a(f's_mul_i32 s57, s{S_NT}, 3'); a('s_lshr_b32 s57, s57, 1'); a('s_mul_i32 s57, s57, 10')
    a('s_sub_u32 s57, s57, 16')
    a('v_add_u32 v3, s56, v1')
    a('v_add_u32 v4, s57, v1')
    a('v_cmp_gt_u32 vcc, 16, v1'); a('v_cndmask_b32 v3, v4, v3, vcc')
    a('v_mov_b32 v4, s56')
    a('v_cmp_gt_u32 vcc, 36, v1'); a('v_cndmask_b32 v3, v4, v3, vcc')
    a('v_min_u32 v3, 239, v3') if False else None
    a('v_lshlrev_b32 v3, 7, v3')
    a(f's_mov_b32 s61, {WS_F0}')
    a('v_lshlrev_b32 v2, 4, v1')
    SO, SI, SL = 48, 62, 52
    so = [48, 49, 50, 51, 52]; si = [53, 54, 55, 62, 63]; sl = [64, 65, 66, 67, 68]
    for i in range(5):
        Lx = a.label('px'); Ld = a.label('pd')
        a('s_mul_i32 s56, s60, 5'); a(f's_add_u32 s56, s56, {i}')
        a(f's_lshl_b32 s{sl[i]}, s56, 10')
        a('s_cmp_ge_u32 s56, 8'); a(f's_cbranch_scc1 {Lx}')
        a('s_lshr_b32 s57, s56, 1'); a(f's_lshl_b32 s58, s{S_M}, 2'); a('s_add_u32 s57, s57, s58')
        a('s_mul_i32 s57, s57, 40960')
        a('s_and_b32 s58, s56, 1'); a('s_lshl_b32 s58, s58, 10'); a('s_add_u32 s57, s57, s58')
        a(f's_add_u32 s{so[i]}, s57, {WS_XNF}'); a(f's_mov_b32 s{si[i]}, 2048')
        a(f's_branch {Ld}')
        a.put(Lx)
        a('s_sub_u32 s57, s56, 8'); a('s_lshl_b32 s57, s57, 10')
        a(f's_mul_i32 s58, s{S_NT}, 245760'); a('s_add_u32 s57, s57, s58')
        a(f's_add_u32 s{so[i]}, s57, {WS_W13}'); a(f's_mov_b32 s{si[i]}, 12288')
        a.put(Ld)
    poll_flags(a, 3, 1, 0, 4, 61)
    stamp(a, 7)
    def issue():
        for i in range(5):
            a(f's_add_u32 m0, s69, s{sl[i]}')
            a(f'buffer_load_dwordx4 v2, {WS}, s{so[i]} offen sc1 lds')
            a(f's_add_u32 s{so[i]}, s{so[i]}, s{si[i]}')
        a(f's_add_u32 s69, s69, {G1_STAGE}'); a(f's_cmp_eq_u32 s69, {NST*G1_STAGE}'); a('s_cselect_b32 s69, 0, s69')
    a('s_mov_b32 s69, 0')
    issued = 0
    for _ in range(3):
        issue(); issued += 1
    a(f's_waitcnt vmcnt({(issued - 2)*5})')
    a('s_barrier')
    st = 0
    while True:
        allowed = min(st + NST, 20)
        n = min(2, allowed - issued)
        if n <= 1 and issued + n - st == NST: break
        for _ in range(n): issue(); issued += 1
        a(f's_waitcnt vmcnt({(issued - min(st + 3, 20))*5})')
        a('s_barrier')
        st += 1
    st_end = 20 - NST + 1
    n_steady = st_end - st
    a(f's_mov_b32 s61, {n_steady}')
    Ls = a.label('steady')
    a.put(Ls)
    issue()
    a(f's_waitcnt vmcnt({(NST - 3)*5})')
    a('s_barrier')
    a('s_sub_u32 s61, s61, 1'); a('s_cmp_lg_u32 s61, 0'); a(f's_cbranch_scc1 {Ls}')
    issued += n_steady; st += n_steady
    assert issued == 20, issued
    while st < 19:
        a(f's_waitcnt vmcnt({max(0, (20 - min(st + 3, 20))*5)})')
        a('s_barrier')
        st += 1
    a('s_barrier')
    stamp(a, 8)
    L_sync = a.label('sync')
    a(f's_cmp_eq_u32 s{S_WAVE}, 7'); a(f's_cbranch_scc1 {L_sync}')
    a(f's_cmp_ge_u32 s60, s{S_NCH}'); a(f's_cbranch_scc1 {L_fin}')
    a('s_lshl_b32 s62, s60, 5'); a(f's_add_u32 s62, s62, s{S_CH0}')
    a(f's_mul_i32 s63, s60, {KSTR}'); a(f's_add_u32 s63, s63, {KLIN}')
    a(f's_mul_i32 s65, s60, {CV_SIZE}')
    a(f's_add_u32 s64, s65, {CV_U}')
    srd(a, 48, S_DSK, 1280)
    a('s_lshl_b32 s67, s62, 1'); a('v_mov_b32 v9, 0')
    a('buffer_load_ushort v9, v9, s[48:51], s67 offen')
    a('v_lshlrev_b32 v2, 4, v1')
    for r in range(4): a(f'v_mov_b32 v{4+r}, 0')
    a('v_add_u32 v8, s64, v2')
    a('s_mov_b64 s[58:59], exec'); a('s_mov_b32 exec_hi, 0')
    a('ds_write_b128 v8, v[4:7]')
    a('s_mov_b64 exec, s[58:59]')
    a('v_add_u32 v10, s63, v2'); a('v_add_u32 v11, s65, v2')
    a('s_mov_b32 s66, 0')
    Lb = a.label('build')
    a.put(Lb)
    a('ds_read_b128 v[12:15], v10')
    a('ds_read_b128 v[16:19], v10 offset:16')
    a('ds_read2_b32 v[28:29], v10 offset0:1 offset1:2')
    a('ds_read2_b32 v[30:31], v10 offset0:3 offset1:4')
    a('ds_read2_b32 v[32:33], v10 offset0:5 offset1:6')
    a('s_waitcnt lgkmcnt(3)')
    w = [12 + i for i in range(8)]
    a(f'ds_write_b128 v11, v[12:15] offset:{0*CP_STRIDE + 16*COPY_O[0]}')
    a(f'ds_write_b128 v11, v[14:17] offset:{4*CP_STRIDE + 16*COPY_O[4]}')
    for k in range(7):
        a(f'v_alignbyte_b32 v{20+k}, v{w[k+1]}, v{w[k]}, 2')
    a(f'ds_write_b128 v11, v[20:23] offset:{1*CP_STRIDE + 16*COPY_O[1]}')
    a(f'ds_write_b128 v11, v[22:25] offset:{5*CP_STRIDE + 16*COPY_O[5]}')
    for k in range(1, 7):
        a(f'v_alignbyte_b32 v{33+k}, v{w[k+1]}, v{w[k]}, 2')
    a(f'ds_write_b128 v11, v[34:37] offset:{3*CP_STRIDE + 16*COPY_O[3]}')
    a(f'ds_write_b128 v11, v[36:39] offset:{7*CP_STRIDE + 16*COPY_O[7]}')
    a('s_waitcnt lgkmcnt(6)')
    a(f'ds_write_b128 v11, v[28:31] offset:{2*CP_STRIDE + 16*COPY_O[2]}')
    a(f'ds_write_b128 v11, v[30:33] offset:{6*CP_STRIDE + 16*COPY_O[6]}')
    a('v_add_u32 v10, 1024, v10'); a('v_add_u32 v11, 1024, v11')
    a('s_add_u32 s66, s66, 1')
    a('s_cmp_eq_u32 s66, 4')
    a('s_cselect_b64 exec, 3, exec')
    a('s_cmp_lt_u32 s66, 5'); a(f's_cbranch_scc1 {Lb}')
    a('s_mov_b64 exec, -1')
    stamp(a, 9)
    lds_wait(a, 12, 1, vt=4)
    a('v_mul_u32_u24 v3, 10240, v1')
    a('s_lshl_b32 s66, s62, 4'); a(f's_add_u32 s66, s66, {WS_XNT}')
    for i in range(4):
        a(f's_add_u32 m0, s64, {512 + 1024*i}')
        a(f's_add_u32 s67, s66, {64*10240*i}')
        a(f'buffer_load_dwordx4 v3, {WS}, s67 offen sc1 lds')
    a('v_and_b32 v10, 15, v1'); a('v_lshrrev_b32 v11, 4, v1')
    a('v_add_u32 v12, 1, v10'); a('v_and_b32 v12, 7, v12')
    a(f'v_mul_u32_u24 v13, {CP_STRIDE}, v12')
    ow = sum(COPY_O[c] << (4*c) for c in range(8))
    a(f'v_mov_b32 v14, {ow:#x}'); a('v_lshlrev_b32 v15, 2, v12'); a('v_lshrrev_b32 v14, v15, v14'); a('v_and_b32 v14, 15, v14')
    a('v_subrev_u32 v15, 7, v10'); a('v_ashrrev_i32 v15, 3, v15'); a('v_add_u32 v14, v14, v15')
    a('v_lshrrev_b32 v15, 1, v11'); a('v_lshl_add_u32 v14, v15, 1, v14')
    a('v_and_b32 v15, 1, v11'); a('v_sub_u32 v14, v14, v15'); a('v_add_u32 v14, 2, v14')
    a('v_lshl_add_u32 v13, v14, 4, v13'); a('v_add_u32 v2, s65, v13')
    a('v_lshlrev_b32 v13, 5, v10'); a('v_lshrrev_b32 v15, 1, v11'); a('v_lshlrev_b32 v15, 5, v15')
    a('v_sub_u32 v13, v13, v15'); a('v_and_b32 v15, 1, v11'); a('v_lshl_add_u32 v13, v15, 4, v13')
    a('v_add_u32 v13, 512, v13'); a('v_add_u32 v3, s64, v13')
    ACCC = 64; BF = [96, 128]; AF = [160, 192]
    for r in range(32): a(f'v_mov_b32 v{ACCC+r}, 0')
    a('s_waitcnt vmcnt(0) lgkmcnt(0)')
    stamp(a, 10)
    a('v_lshlrev_b32 v9, 16, v9')
    def creads(s):
        r = []
        for j in range(8):
            r.append(f'ds_read_b128 v[{BF[s]+4*j}:{BF[s]+4*j+3}], v3 offset:{512*j}')
            r.append(f'ds_read_b128 v[{AF[s]+4*j}:{AF[s]+4*j+3}], v2 offset:{512*j}')
        return r
    def cstep(s, prefetch):
        rd = creads(s ^ 1) if prefetch else []
        if prefetch:
            a('v_add_u32 v2, 64, v2'); a('v_subrev_u32 v3, 64, v3')
        k = 0
        for q in range(8):
            for j in range(q, 8):
                a(f'v_mfma_f32_16x16x32_bf16 v[{ACCC+4*j}:{ACCC+4*j+3}], v[{AF[s]+4*q}:{AF[s]+4*q+3}], v[{BF[s]+4*(j-q)}:{BF[s]+4*(j-q)+3}], v[{ACCC+4*j}:{ACCC+4*j+3}]')
                k += 1
                if rd and k % 2 == 0: a(rd.pop(0))
        while rd: a(rd.pop(0))
        a('s_waitcnt lgkmcnt(0)')
    for x in creads(0): a(x)
    a('s_waitcnt lgkmcnt(0)')
    a('s_mov_b32 s66, 0')
    Lc = a.label('p0'); Lce = a.label('p0e')
    a.put(Lc)
    cstep(0, True)
    a('s_cmp_eq_u32 s66, 3'); a(f's_cbranch_scc1 {Lce}')
    cstep(1, True)
    a('s_add_u32 s66, s66, 1')
    a(f's_branch {Lc}')
    a.put(Lce)
    cstep(1, False)
    stamp(a, 11)
    a('v_lshlrev_b32 v13, 5, v10'); a('v_lshrrev_b32 v15, 1, v11'); a('v_lshl_add_u32 v13, v15, 4, v13')
    a('v_and_b32 v15, 1, v11'); a('v_sub_u32 v15, 1, v15'); a('v_lshl_add_u32 v13, v15, 3, v13')
    a('v_add_u32 v13, 512, v13'); a('v_add_u32 v13, s64, v13')
    for j in range(8):
        a(f'ds_read_b64 v[{96+2*j}:{96+2*j+1}], v13 offset:{512*j}')
    a('v_lshlrev_b32 v14, 5, v10'); a('v_and_b32 v15, 2, v11'); a('v_lshl_add_u32 v14, v15, 3, v14')
    a('v_and_b32 v15, 1, v11'); a('v_lshl_add_u32 v14, v15, 9, v14')
    a('s_lshl_b32 s66, s62, 12'); a(f's_add_u32 s66, s66, {WS_Y}')
    a('s_waitcnt lgkmcnt(0)')
    for jp in range(4):
        o = 28 + 4*(jp & 1)
        for h in range(2):
            j = 2*jp + h
            u0, u1 = 96 + 2*j, 96 + 2*j + 1
            a(f'v_and_b32 v16, 0xffff0000, v{u1}'); a(f'v_lshlrev_b32 v17, 16, v{u1}')
            a(f'v_and_b32 v18, 0xffff0000, v{u0}'); a(f'v_lshlrev_b32 v19, 16, v{u0}')
            for r in range(4):
                a(f'v_fma_f32 v{16+r}, v{16+r}, v9, v{ACCC+4*j+r}')
            a(f'v_cvt_pk_bf16_f32 v{o+2*h}, v16, v17')
            a(f'v_cvt_pk_bf16_f32 v{o+2*h+1}, v18, v19')
        a(f'v_permlane16_swap_b32 v{o}, v{o+2}')
        a(f'v_permlane16_swap_b32 v{o+1}, v{o+3}')
        a(f'buffer_store_dwordx4 v[{o}:{o+3}], v14, {WS}, s66 offen offset:{1024*jp} sc1')
    a('s_waitcnt vmcnt(0)')
    stamp(a, 12)
    a('s_and_b32 s65, s2, 7'); a('s_lshl_b32 s65, s65, 5'); a('s_lshr_b32 s66, s2, 3'); a('s_add_u32 s65, s65, s66')
    a('s_lshl_b32 s65, s65, 7'); a(f's_add_u32 s65, s65, {WS_F3}')
    lds_signal_last(a, 8, f's{S_NCH}', 65, vt=4)
    a(f's_branch {L_fin}')
    a.put(L_sync)
    a('v_lshlrev_b32 v3, 7, v1')
    a(f's_mov_b32 s61, {WS_F0}')
    poll_flags(a, 3, 4, 64*128, 4, 61)
    lds_set(a, 12, vt=8)
    Le = a.label('ep')
    a('s_cmp_eq_u32 s2, 0'); a(f's_cbranch_scc0 {Le}')
    a('v_mov_b32 v8, 0'); a(f'v_mov_b32 v9, s{S_TAG}'); a(f's_mov_b32 s56, {WS_EPOCH}')
    a('s_mov_b64 s[58:59], exec'); a('s_mov_b64 exec, 1')
    a(f'buffer_store_dword v9, v8, {WS}, s56 offen sc1')
    a('s_mov_b64 exec, s[58:59]')
    a.put(Le)
    stamp(a, 9)
    a('v_and_b32 v3, 15, v1'); a('v_lshlrev_b32 v3, 7, v3')
    a(f's_lshr_b32 s61, s{S_MT}, 1'); a('s_lshl_b32 s61, s61, 11'); a(f's_add_u32 s61, s61, {WS_F2}')
    poll_flags(a, 3, 1, 0, 4, 61)
    lds_set(a, 16, vt=8)
    stamp(a, 10)
    a('v_and_b32 v3, 31, v1'); a('v_lshlrev_b32 v3, 7, v3')
    a(f's_lshl_b32 s61, s{S_NT2}, 12'); a(f's_add_u32 s61, s61, {WS_F3}')
    poll_flags(a, 3, 1, 0, 4, 61)
    stamp(a, 11)
    lds_wait(a, 8, f's{S_NCH}', vt=6)
    a('v_lshrrev_b32 v3, 3, v1'); a('v_lshlrev_b32 v3, 12, v3')
    a('v_and_b32 v4, 7, v1'); a('v_lshl_add_u32 v3, v4, 4, v3')
    a(f's_mul_i32 s60, s{S_NT2}, 80'); a('s_lshl_b32 s60, s60, 12')
    a(f's_lshl_b32 s61, s{S_MT}, 7'); a('s_add_u32 s60, s60, s61'); a(f's_add_u32 s60, s60, {WS_Y}')
    for i in range(10):
        a(f's_mov_b32 m0, {YT + 1024*i}')
        a(f's_add_u32 s61, s60, {i << 15}')
        a(f'buffer_load_dwordx4 v3, {WS}, s61 offen sc1 lds')
    a('s_waitcnt vmcnt(0)')
    stamp(a, 12)
    a('s_barrier')
    a.put(L_fin)
    stamp(a, 16)
    prof_dump(a)
    a.put(end)
    body = a.finish()
    return body


def build():
    ref = open('cdna_kernels/' + NAME + '.s.ref').read().split('\n')
    out = []
    for l in ref:
        if not l.startswith(';'): break
        if '@launch' in l or 'Override launch' in l or 'grid=ceil' in l: continue
        out.append(l)
    out.append(f'; @launch grid=(256,1,1) block=(512,1,1) lds={LDS_SIZE}')
    s = '\n'.join(out) + '\n'
    s += f'''.amdgcn_target "amdgcn-amd-amdhsa--gfx950"
.text
.globl {KNAME}
.p2align 8
.type {KNAME},@function
{KNAME}:
{gen()}
    s_endpgm
.section .rodata,"a"
.p2align 6
.amdhsa_kernel {KNAME}
  .amdhsa_next_free_vgpr 256
  .amdhsa_next_free_sgpr 96
  .amdhsa_accum_offset 256
  .amdhsa_group_segment_fixed_size 0
  .amdhsa_kernarg_size 128
  .amdhsa_user_sgpr_count 2
  .amdhsa_user_sgpr_kernarg_segment_ptr 1
  .amdhsa_system_sgpr_workgroup_id_x 1
.end_amdhsa_kernel
'''
    return s


if __name__ == '__main__':
    if '--prof' in sys.argv:
        PROF = True; sys.argv.remove('--prof')
    if '--dbg' in sys.argv:
        PROF = True; DBGSUM = True; sys.argv.remove('--dbg')
    out = sys.argv[1] if len(sys.argv) > 1 else 'cdna_kernels/' + NAME + '.s'
    open(out, 'w').write(build())
    print('written', out)
```
